```python
import torch

def _softmax(x, axis=-1):
    return torch.softmax(x, dim=axis)
def _gelu(x):
    return torch.nn.functional.gelu(x, approximate="tanh")
def _silu(x):
    return torch.nn.functional.silu(x)
def _sigmoid(x):
    return torch.sigmoid(x)
def _layernorm(x, axis=-1, eps=1e-5):
    m = x.mean(dim=axis, keepdim=True)
    v = x.var(dim=axis, keepdim=True, unbiased=False)
    return (x - m) / torch.sqrt(v + eps)
def _scatter_add(tgt, idx, src, axis=0):
    return tgt.clone().index_add_(axis, idx, src)
def _segment_sum(src, seg, n):
    out = torch.zeros((n,) + src.shape[1:], dtype=src.dtype)
    return out.index_add_(0, seg, src)
def _pad(x, pw):
    flat = tuple(v for pair in reversed(pw) for v in pair)
    return torch.nn.functional.pad(x, flat)

kernel_name = 'gated_mix__ssm_conv_h3__swiglu_ffn__prompt'

def setup_inputs():

    _w = (lambda a: (lambda t: t.to(torch.bfloat16) if t.is_floating_point() else t)(torch.as_tensor(a)))
    def _A_setup():
        B, S, D = 1, 2048, 1024
        ks = 4
        return {
            "q": _w((lambda *s: torch.randn(*s, dtype=torch.bfloat16) * 0.05)(B, S, D)),
            "k": _w((lambda *s: torch.randn(*s, dtype=torch.bfloat16) * 0.4)(B, S, D)),
            "v": _w((lambda *s: torch.randn(*s, dtype=torch.bfloat16) * 0.4)(B, S, D)),
            "shift_k": _w((lambda *s: torch.randn(*s, dtype=torch.bfloat16) * 0.4)(D, ks) * 0.5),
            "ssm_k": _w((lambda *s: torch.randn(*s, dtype=torch.bfloat16) * 0.4)(D, S) * (1.0 / S ** 0.5)),
            "ssm_D": _w((lambda *s: torch.randn(*s, dtype=torch.bfloat16) * 0.4)(D)),
        }
    _A_in = _A_setup()

    def _B_setup():
        B, S, D, F = 1, 2048, 1024, 3584
        return {
            "x": _w((lambda *s: torch.randn(*s, dtype=torch.bfloat16) * 0.05)(B, S, D)),
            "w_gate": _w((lambda *s: torch.randn(*s, dtype=torch.bfloat16) * 0.05)(D, F)),
            "w_up": _w((lambda *s: torch.randn(*s, dtype=torch.bfloat16) * 0.05)(D, F)),
            "w_down": _w((lambda *s: torch.randn(*s, dtype=torch.bfloat16) * 0.05)(F, D)),
        }
    _B_in = _B_setup()

    return {
        "A_q": _A_in["q"],
        "A_k": _A_in["k"],
        "A_v": _A_in["v"],
        "A_shift_k": _A_in["shift_k"],
        "A_ssm_k": _A_in["ssm_k"],
        "A_ssm_D": _A_in["ssm_D"],
        "B_x": _B_in["x"],
        "B_w_gate": _B_in["w_gate"],
        "B_w_up": _B_in["w_up"],
        "B_w_down": _B_in["w_down"],
        "gate_w": _w((lambda *s: torch.randn(*s, dtype=torch.bfloat16) * 0.05)(1024) * 16.0),
    }

def reference(A_q, A_k, A_v, A_shift_k, A_ssm_k, A_ssm_D, B_x, B_w_gate, B_w_up, B_w_down, gate_w):
    def _A_ref(q, k, v, shift_k, ssm_k, ssm_D):
        B, S, D = q.shape
        ks = shift_k.shape[-1]
        k_pad = _pad(k, ((0, 0), (ks - 1, 0), (0, 0)))
        k_shift = torch.zeros_like(k)
        for t in range(ks):
            k_shift = k_shift + k_pad[:, t:t + S, :] * shift_k[:, ks - 1 - t][None, None, :]
        kv = k_shift * v
        L = 2 * S
        kv_pad = _pad(kv, ((0, 0), (0, S), (0, 0)))
        kf_pad = _pad(ssm_k, ((0, 0), (0, S)))
        kv_f = (lambda x, axes=(-2,-1): torch.fft.rfft2(x.float(), dim=axes))(kv_pad[:, None, :, :], axes=(1, 2))
        kf_f = (lambda x, axes=(-2,-1): torch.fft.rfft2(x.float(), dim=axes))(kf_pad[:, None, :], axes=(1, 2))
        kf_f = (lambda x, *d: x.permute(*d))(kf_f, 1, 2, 0)
        y_f = kv_f * kf_f[None, :, :, :]
        y = (lambda x, s, axes=(-2,-1): torch.fft.irfft2(x, s=s, dim=axes).to(torch.bfloat16))(y_f, (1, L), axes=(1, 2))[:, 0, :S, :]
        y = y + kv * ssm_D[None, None, :]
        return q * y

    def _B_ref(x, w_gate, w_up, w_down):
        g = _silu(x @ w_gate)
        u = x @ w_up
        return (g * u) @ w_down

    x = A_q
    g = _sigmoid((x * gate_w).sum(-1, keepdims=True))
    a = _A_ref(x, A_k, A_v, A_shift_k, A_ssm_k, A_ssm_D)
    b = _B_ref(x, B_w_gate, B_w_up, B_w_down)
    return g * a + (1 - g) * b
```

```python
import re

REG_RE = re.compile(r"(?<![\w.])([vas])(?:(\d+)|\[(\d+):(\d+)\])(?![\w])")

TRANS = ("v_exp_f32", "v_log_f32", "v_rcp_f32", "v_rsq_f32", "v_sqrt_f32", "v_sin_f32", "v_cos_f32")


def regs_of(op):
    out = []
    for m in REG_RE.finditer(op):
        f = m.group(1)
        if m.group(2) is not None:
            out.append((f, int(m.group(2))))
        else:
            out.extend((f, i) for i in range(int(m.group(3)), int(m.group(4)) + 1))
    for sp in ("vcc", "exec", "m0"):
        if re.search(r"(?<![\w])" + sp + r"(?![\w])", op):
            out.append((sp, 0))
    return out


def split_ops(s):
    ops, depth, cur = [], 0, ""
    for ch in s:
        if ch == "[" or ch == "(":
            depth += 1
        elif ch == "]" or ch == ")":
            depth -= 1
        if ch == "," and depth == 0:
            ops.append(cur.strip()); cur = ""
        else:
            cur += ch
    if cur.strip():
        ops.append(cur.strip())
    return ops


class Ins:
    __slots__ = ("text", "op", "kind", "rd", "wr", "tag", "srcc", "sab", "pseudo", "arg")

    def __init__(self, text, tag=None):
        self.text = text
        self.tag = tag
        self.pseudo = None
        self.arg = None
        self.srcc = []
        self.sab = []
        t = text.split(";")[0].strip()
        if not t or t.endswith(":") or t.startswith("."):
            self.op = ""; self.kind = "label" if t.endswith(":") else "none"; self.rd = []; self.wr = []
            return
        parts = t.split(None, 1)
        op = parts[0]
        op = re.sub(r"_(e32|e64|sdwa|dpp)$", "", op)
        self.op = op
        rest = parts[1] if len(parts) > 1 else ""
        ops = split_ops(rest)
        rd, wr = [], []
        k = None
        if op.startswith("v_mfma"):
            k = "mfma"
            wr = regs_of(ops[0]); self.sab = regs_of(ops[1]) + regs_of(ops[2]); self.srcc = regs_of(ops[3])
            rd = self.sab + self.srcc
        elif op.startswith("ds_read") or op.startswith("ds_bpermute") or op.startswith("ds_permute") or op.startswith("ds_swizzle"):
            k = "ds"; wr = regs_of(ops[0]); rd = [r for o in ops[1:] for r in regs_of(o)]
        elif op.startswith("ds_"):
            k = "ds"; rd = [r for o in ops for r in regs_of(o)]
        elif op.startswith("buffer_load") or op.startswith("global_load"):
            if re.search(r"\blds\b", rest) or op.startswith("global_load_lds"):
                k = "dma"; rd = [r for o in ops for r in regs_of(o)] + [("m0", 0)]
            else:
                k = "vload"; wr = regs_of(ops[0]); rd = [r for o in ops[1:] for r in regs_of(o)]
        elif op.startswith("buffer_store") or op.startswith("global_store"):
            k = "vstore"; rd = [r for o in ops for r in regs_of(o)]
        elif op.startswith("buffer_atomic") or op.startswith("global_atomic"):
            k = "vstore"; rd = [r for o in ops for r in regs_of(o)]
            if re.search(r"\bsc0\b", rest):
                k = "vload"; wr = regs_of(ops[0])
        elif op in ("buffer_inv", "buffer_wbl2"):
            k = "vstore"
        elif op.startswith("s_load") or op.startswith("s_buffer_load") or op in ("s_memtime", "s_memrealtime"):
            k = "smem"; wr = regs_of(ops[0]); rd = [r for o in ops[1:] for r in regs_of(o)]
        elif op == "s_waitcnt":
            k = "wait"
        elif op == "s_barrier":
            k = "barrier"
        elif op == "s_nop":
            k = "nop"
        elif op.startswith("s_cbranch") or op in ("s_branch", "s_endpgm", "s_setpc_b64"):
            k = "branch"; rd = [r for o in ops for r in regs_of(o)]
        elif op.startswith("s_cmp") or op.startswith("s_bitcmp"):
            k = "salu"; rd = [r for o in ops for r in regs_of(o)]
        elif op in ("s_setprio", "s_sleep", "s_sendmsg"):
            k = "salu"
        elif op.startswith("s_"):
            k = "salu"; wr = regs_of(ops[0]); rd = [r for o in ops[1:] for r in regs_of(o)]
            if "saveexec" in op:
                wr = wr + [("exec", 0)]; rd = rd + [("exec", 0)]
            if op in ("s_addk_i32", "s_mulk_i32"):
                rd = rd + wr
        elif op.startswith("v_"):
            k = "valu"
            if op.startswith("v_cmpx"):
                wr = regs_of(ops[0]) + [("exec", 0)]; rd = [r for o in ops[1:] for r in regs_of(o)]
            elif op in ("v_swap_b32",) or op.startswith("v_permlane16_swap") or op.startswith("v_permlane32_swap"):
                wr = regs_of(ops[0]) + regs_of(ops[1]); rd = list(wr)
            elif re.match(r"v_(add|sub|subrev|addc|subb|subbrev)_co_u32", op) or op.startswith("v_div_scale") or op.startswith("v_mad_u64"):
                wr = regs_of(ops[0]) + regs_of(ops[1]); rd = [r for o in ops[2:] for r in regs_of(o)]
            else:
                wr = regs_of(ops[0]); rd = [r for o in ops[1:] for r in regs_of(o)]
                if op.startswith("v_fmac") or op.startswith("v_pk_fmac") or op.startswith("v_dot2c") or op.startswith("v_mac") or op == "v_writelane_b32":
                    rd = rd + wr
                if op == "v_cndmask_b32" and len(ops) == 3:
                    rd = rd + [("vcc", 0)]
                if "UNUSED_PRESERVE" in rest or "row_" in rest or "quad_perm" in rest:
                    rd = rd + wr
        else:
            raise ValueError("cannot classify: " + text)
        self.kind = k
        self.rd = rd
        self.wr = wr

    def states(self):
        if self.kind in ("label", "none"):
            return 0
        if self.kind == "nop":
            return int(self.text.split()[1], 0) + 1
        return 1


def I(text, tag=None):
    return Ins(text, tag)


def WAITTAG(tag):
    i = Ins("s_waitcnt vmcnt(0)")
    i.pseudo = "waittag"; i.arg = tag
    return i


def WAITDS(tag=None):
    i = Ins("s_waitcnt lgkmcnt(0)")
    i.pseudo = "waitds"; i.arg = tag
    return i


class State:
    def __init__(self):
        self.vm = []
        self.ds = []
        self.smem = []

    def copy(self):
        s = State(); s.vm = list(self.vm); s.ds = list(self.ds); s.smem = list(self.smem)
        return s


def parse_wait(text):
    vm = re.search(r"vmcnt\((\d+)\)", text)
    lg = re.search(r"lgkmcnt\((\d+)\)", text)
    return (int(vm.group(1)) if vm else None, int(lg.group(1)) if lg else None)


def insert_waits(seq, st=None):
    st = st or State()
    out = []

    def emit_wait(vm, lg):
        if vm is not None and vm >= len(st.vm):
            vm = None
        if lg is not None and not st.smem and lg >= len(st.ds):
            lg = None
        if vm is None and lg is None:
            return
        if vm is not None:
            vm = min(vm, 63)
        if lg is not None:
            lg = min(lg, 15)
            if st.smem:
                lg = 0
        if out and out[-1].kind == "wait" and out[-1].pseudo == "auto":
            pv, pl = parse_wait(out[-1].text)
            out.pop()
            if pv is not None:
                vm = pv if vm is None else min(vm, pv)
            if pl is not None:
                lg = pl if lg is None else min(lg, pl)
        t = "s_waitcnt" + (f" vmcnt({vm})" if vm is not None else "") + (f" lgkmcnt({lg})" if lg is not None else "")
        w = Ins(t); w.pseudo = "auto"
        out.append(w)
        apply_wait(vm, lg)

    def apply_wait(vm, lg):
        if vm is not None and len(st.vm) > vm:
            st.vm = st.vm[len(st.vm) - vm:] if vm > 0 else []
        if lg is not None:
            if lg == 0:
                st.ds = []; st.smem = []
            elif len(st.ds) > lg:
                st.ds = st.ds[len(st.ds) - lg:]

    for ins in seq:
        if ins.pseudo == "waittag":
            idx = [n for n, (w, tg) in enumerate(st.vm) if (tg in ins.arg if isinstance(ins.arg, (list, set, frozenset)) else tg == ins.arg)]
            if idx:
                emit_wait(len(st.vm) - 1 - max(idx), None)
            continue
        if ins.pseudo == "waitds":
            if ins.arg is None:
                if st.ds or st.smem:
                    emit_wait(None, 0)
            else:
                idx = [n for n, (w, tg) in enumerate(st.ds) if tg == ins.arg]
                if idx:
                    emit_wait(None, len(st.ds) - 1 - max(idx))
            continue
        if ins.kind == "wait":
            vm, lg = parse_wait(ins.text)
            apply_wait(vm, lg)
            out.append(ins)
            continue
        touched = set(ins.rd) | set(ins.wr)
        vm = lg = None
        if touched:
            for n, (w, tg) in enumerate(st.vm):
                if w & touched:
                    vm = len(st.vm) - 1 - n
            for n, (w, tg) in enumerate(st.ds):
                if w & touched:
                    lg = len(st.ds) - 1 - n
            for w in st.smem:
                if w & touched:
                    lg = 0
        if vm is not None or lg is not None:
            emit_wait(vm, lg)
        if ins.kind in ("vload", "vstore", "dma") and len(st.vm) >= 63:
            emit_wait(62, None)
        if ins.kind == "ds" and len(st.ds) >= 15:
            emit_wait(None, 14)
        out.append(ins)
        if ins.kind in ("vload", "vstore", "dma"):
            st.vm.append((set(ins.wr), ins.tag))
        elif ins.kind == "ds":
            st.ds.append((set(ins.wr), ins.tag))
        elif ins.kind == "smem":
            st.smem.append(set(ins.wr))
    return out, st


def mfma_passes(op):
    if "32x32x16" in op or "32x32x8" in op:
        return 8
    if "16x16x32" in op or "16x16x16" in op:
        return 4
    raise ValueError(op)


def need_states(p, c):
    n = 0
    pw, cr, cw = set(p.wr), set(c.rd), set(c.wr)
    isv = lambda r: r[0] in ("v", "a")
    if p.kind == "mfma":
        ps = mfma_passes(p.op)
        d = pw
        if c.kind == "mfma":
            if d & set(c.sab):
                n = max(n, {4: 8, 8: 12}[ps])
            if d & set(c.srcc):
                if not (set(c.srcc) == d and mfma_passes(c.op) == ps):
                    n = max(n, {4: 6, 8: 10}[ps])
            elif d & cw:
                n = max(n, {4: 6, 8: 10}[ps])
        elif c.kind in ("valu", "ds", "vload", "vstore", "dma"):
            if d & (cr | cw):
                n = max(n, {4: 8, 8: 12}[ps])
        if c.kind == "valu" and set(p.srcc) & cw:
            n = max(n, {4: 3, 8: 7}[ps])
    if p.kind == "valu":
        vw = {r for r in pw if isv(r)}
        sw = {r for r in pw if r[0] in ("s", "vcc")}
        if c.kind == "mfma" and vw & cr:
            n = max(n, 2)
        if c.kind == "mfma" and ("exec", 0) in pw:
            n = max(n, 4)
        if c.kind in ("vload", "vstore", "dma") and sw & cr:
            n = max(n, 5)
        if c.kind == "valu":
            if sw & cr:
                n = max(n, 4 if c.op in ("v_readlane_b32", "v_writelane_b32") else 2)
            if c.op in ("v_readlane_b32", "v_readfirstlane_b32") and vw & cr:
                n = max(n, 1)
            if c.op.startswith("v_permlane") and vw & cr:
                n = max(n, 2)
            if ("row_" in c.text or "quad_perm" in c.text or "wave_" in c.text) and vw & cr:
                n = max(n, 2)
            if p.op in TRANS and c.op not in TRANS and vw & cr:
                n = max(n, 1)
            if ("sdwa" in p.text or "dst_sel" in p.text or "op_sel" in p.text) and not p.op.startswith("v_pk_") and vw & (cr | cw):
                n = max(n, 1)
            if ("exec", 0) in pw and (c.op in ("v_readlane_b32", "v_readfirstlane_b32", "v_writelane_b32") or c.op.startswith("v_permlane")):
                n = max(n, 4)
            if ("exec", 0) in pw and ("row_" in c.text or "quad_perm" in c.text):
                n = max(n, 5)
        if c.kind == "salu" and sw & cr:
            n = max(n, 1)
    if p.kind == "salu" and ("m0", 0) in pw and c.kind == "dma":
        n = max(n, 1)
    if p.kind == "vstore" and re.search(r"x[34]\b", p.op):
        data = set(regs_of(split_ops(p.text.split(None, 1)[1])[0 if p.op.startswith("buffer") else 1]))
        if data & cw:
            n = max(n, 2 if c.kind == "valu" else 1)
    return n


def pad_hazards(seq, lookback=24, verbose=False, pre=None):
    hist = list(pre or [])
    out = []
    npad = 0
    for c in seq:
        if c.kind in ("label", "none"):
            out.append(c); hist.append(c); continue
        need = 0
        dist = 0
        for p in reversed(hist[-lookback * 2:]):
            if dist >= 20:
                break
            if p.kind not in ("label", "none", "wait", "nop", "barrier"):
                n = need_states(p, c)
                if n > dist:
                    need = max(need, n - dist)
            dist += p.states()
        if need > 0:
            npad += need
            while need > 0:
                k = min(need, 16)
                nop = Ins(f"s_nop {k - 1}")
                out.append(nop); hist.append(nop)
                need -= k
            if verbose:
                print("pad before:", c.text)
        out.append(c); hist.append(c)
    return out, npad


def text_of(seq):
    return "\n".join(("" if i.kind == "label" else "    ") + i.text for i in seq)


def interleave(mfmas, side):
    out = list(side.get(-1, []))
    for n, m in enumerate(mfmas):
        out.append(m)
        out.extend(side.get(n, []))
    return out


def kernel_header(name):
    return [f".globl {name}", ".p2align 8", f".type {name},@function", f"{name}:"]


def kernel_desc(name, vgpr=512, sgpr=102, accum=256):
    return "\n".join([
        f".amdhsa_kernel {name}",
        f"  .amdhsa_next_free_vgpr {vgpr}",
        f"  .amdhsa_next_free_sgpr {sgpr}",
        f"  .amdhsa_accum_offset {accum}",
        "  .amdhsa_group_segment_fixed_size 0",
        "  .amdhsa_kernarg_size 112",
        "  .amdhsa_user_sgpr_count 2",
        "  .amdhsa_user_sgpr_kernarg_segment_ptr 1",
        "  .amdhsa_system_sgpr_workgroup_id_x 1",
        "  .amdhsa_float_denorm_mode_32 3",
        "  .amdhsa_float_denorm_mode_16_64 3",
        ".end_amdhsa_kernel"])
```

```python
from asmlib import *
from gemm1 import srd, KARG, WS_PROF, fix_m0
from pre import *

CSTR = 4160
CW = 4 * CSTR + 4576


class Conv:
    def __init__(self, name="conv_kernel", store_mod="sc1", lb=0, sb=40, vb=8, prof=False):
        self.name = name; self.store_mod = store_mod
        self.lb = lb; self.sb = sb; self.vb = vb
        self.lds = 4 * CW
        self.prof = prof

    def regs(self):
        vb = self.vb
        self.VA = vb
        self.VG = vb + 1
        self.VT = vb + 2
        self.AD = vb + 12
        self.ACC = vb + 16
        self.FA = lambda buf, q: buf * 64 + q * 4
        self.FG = lambda buf, e: buf * 64 + 32 + e * 4
        sb = self.sb
        self.SK, self.SU, self.SY = sb, sb + 4, sb + 8
        self.SL = sb + 12
        self.T0, self.T1, self.T2, self.SD = sb + 13, sb + 14, sb + 15, sb + 16
        self.SH0 = sb + 18

    def loads_hk(self, s_wave, vlane, sptr):
        self.regs()
        o = []
        A = lambda t, tag=None: o.append(I(t, tag))
        T0, T1, T2, VT = self.T0, self.T1, self.T2, self.VT
        o += srd(self.SK, sptr['ssmk'], 1024 * 4096)
        o += srd(self.SU, sptr['ws'], WS_UR_SIZE, WS_UR)
        o += srd(self.SY, sptr['ws'], WS_Y2_SIZE, WS_Y2)
        A(f"s_lshl_b32 s{T0}, s2, 2")
        A(f"s_add_u32 s{T0}, s{T0}, s{s_wave}")
        A(f"s_mul_i32 s{self.SL}, s{s_wave}, {CW}")
        if self.lb:
            A(f"s_add_u32 s{self.SL}, s{self.SL}, {self.lb}")
        A(f"s_lshl_b32 s{T1}, s{T0}, 12")
        A(f"s_load_dwordx2 s[{self.SH0}:{self.SH0+1}], s[{sptr['ssmk']}:{sptr['ssmk']+1}], s{T1}")
        A(f"s_lshr_b32 s{T2}, s{T0}, 1")
        A(f"s_lshl_b32 s{T2}, s{T2}, 2")
        A(f"s_load_dword s{self.SD}, s[{sptr['ssmd']}:{sptr['ssmd']+1}], s{T2}")
        A(f"v_lshlrev_b32 v{VT}, 4, v{vlane}")
        for s in range(4):
            if s:
                A(f"v_add_u32 v{VT}, 2, v{VT}")
            for m in range(4):
                i = I(f"buffer_load_dwordx4 v{VT}, s[{self.SK}:{self.SK+3}], s{T1} offen offset:{m*1024} lds", tag="hk")
                i.arg = (self.SL, s * CSTR + 32, "hk")
                o.append(i)
        return o

    def loads_ur(self, s_wave, vlane):
        o = []
        A = lambda t, tag=None: o.append(I(t, tag))
        T0, T1, T2, VT = self.T0, self.T1, self.T2, self.VT
        A(f"v_lshrrev_b32 v{VT+1}, 2, v{vlane}")
        A(f"v_lshlrev_b32 v{VT+1}, 16, v{VT+1}")
        A(f"v_and_b32 v{VT+2}, 3, v{vlane}")
        A(f"v_lshl_add_u32 v{VT+1}, v{VT+2}, 4, v{VT+1}")
        A(f"s_lshl_b32 s{T1}, s{T0}, 6")
        for m in range(4):
            if m:
                A(f"s_add_u32 s{T1}, s{T1}, {16*65536 - 1024}")
            i = I(f"buffer_load_dwordx4 v{VT+1}, s[{self.SU}:{self.SU+3}], s{T1} offen offset:{m*1024} sc1 lds", tag="ur")
            i.arg = (self.SL, 4 * CSTR, "ur")
            o.append(i)
        return o

    def prep(self, s_wave, vlane):
        o = []
        A = lambda t, tag=None: o.append(I(t, tag))
        T0, T1, T2, VT = self.T0, self.T1, self.T2, self.VT
        Z = self.ACC
        for q in range(4):
            A(f"v_mov_b32 v{Z+q}, 0")
        A(f"v_min_u32 v{VT+2}, 29, v{vlane}")
        A(f"v_lshlrev_b32 v{VT+2}, 4, v{VT+2}")
        A(f"v_add_u32 v{VT+2}, s{self.SL}, v{VT+2}")
        A(f"ds_write_b128 v{VT+2}, v[{Z}:{Z+3}] offset:{4*CSTR+4096}")
        A(f"v_and_b32 v{VT+3}, 3, v{vlane}")
        A(f"v_mul_u32_u24 v{VT+2}, {CSTR}, v{VT+3}")
        A(f"v_add_u32 v{VT+2}, s{self.SL}, v{VT+2}")
        A(f"ds_write_b128 v{VT+2}, v[{Z}:{Z+3}]")
        A(f"v_sub_u32 v{VT+3}, 3, v{VT+3}")
        A(f"v_lshlrev_b32 v{VT+3}, 4, v{VT+3}")
        A(f"v_lshlrev_b64 v[{Z+2}:{Z+3}], v{VT+3}, s[{self.SH0}:{self.SH0+1}]")
        A(f"v_lshlrev_b64 v[{Z+2}:{Z+3}], 16, v[{Z+2}:{Z+3}]")
        A(f"ds_write_b128 v{VT+2}, v[{Z}:{Z+3}] offset:16")
        A(f"v_and_b32 v{VT+2}, 15, v{vlane}")
        A(f"v_add_u32 v{VT+3}, 1, v{VT+2}")
        A(f"v_and_b32 v{VT+4}, 3, v{VT+3}")
        A(f"v_and_b32 v{VT+3}, 28, v{VT+3}")
        A(f"v_lshrrev_b32 v{VT+5}, 4, v{vlane}")
        A(f"v_lshl_add_u32 v{VT+3}, v{VT+5}, 3, v{VT+3}")
        A(f"v_mul_u32_u24 v{VT+4}, {CSTR}, v{VT+4}")
        A(f"v_lshl_add_u32 v{self.VA}, v{VT+3}, 1, v{VT+4}")
        A(f"v_add_u32 v{self.VA}, s{self.SL}, v{self.VA}")
        A(f"v_lshlrev_b32 v{VT+3}, 5, v{VT+2}")
        A(f"v_sub_u32 v{VT+3}, {4*CSTR+480}, v{VT+3}")
        A(f"v_lshl_add_u32 v{VT+3}, v{VT+5}, 4, v{VT+3}")
        A(f"v_add_u32 v{self.VG}, s{self.SL}, v{VT+3}")
        A(f"s_and_b32 s{T2}, s{T0}, 1")
        A(f"s_lshl_b32 s{T2}, s{T2}, 4")
        A(f"s_lshr_b32 s{self.SD}, s{self.SD}, s{T2}")
        A(f"s_and_b32 s{self.SD}, s{self.SD}, 0xffff")
        A(f"v_sub_u32 v{VT+3}, 15, v{VT+2}")
        A(f"v_lshlrev_b32 v{VT+4}, 3, v{VT+5}")
        A(f"v_sub_u32 v{VT+3}, v{VT+3}, v{VT+4}")
        A(f"v_and_b32 v{VT+4}, 1, v{VT+3}")
        A(f"v_lshlrev_b32 v{VT+4}, 4, v{VT+4}")
        A(f"v_lshlrev_b32 v{VT+4}, v{VT+4}, s{self.SD}")
        A(f"v_ashrrev_i32 v{VT+3}, 1, v{VT+3}")
        for q in range(4):
            A(f"v_cmp_eq_u32 vcc, {q}, v{VT+3}")
            A(f"v_cndmask_b32 v{self.AD+q}, 0, v{VT+4}, vcc")
        return o

    def reads(self, r):
        buf = r & 1
        out = []
        for n in range(8):
            fa = self.FA(buf, n)
            off = 64 * (8 * n + r)
            out.append(I(f"ds_read_b64 a[{fa}:{fa+1}], v{self.VA} offset:{off}", tag=("cr", r, n)))
            out.append(I(f"ds_read_b64 a[{fa+2}:{fa+3}], v{self.VA} offset:{off+8}", tag=("cr", r, n)))
            fg = self.FG(buf, n)
            out.append(I(f"ds_read_b128 a[{fg}:{fg+3}], v{self.VG} offset:{2*(1792 - 256*n + 32*r)}", tag=("cr", r, n)))
        return out

    def mfmas(self, r):
        buf = r & 1
        mf = []
        for c in range(8):
            acc = f"v[{self.ACC+4*c}:{self.ACC+4*c+3}]"
            if r == 0:
                fg = self.FG(buf, c)
                mf.append(I(f"v_mfma_f32_16x16x32_bf16 {acc}, v[{self.AD}:{self.AD+3}], a[{fg}:{fg+3}], 0"))
            for q in range(c + 1):
                fa = self.FA(buf, q); fg = self.FG(buf, c - q)
                mf.append(I(f"v_mfma_f32_16x16x32_bf16 {acc}, a[{fa}:{fa+3}], a[{fg}:{fg+3}], {acc}"))
        return mf

    def main(self, extra=None):
        o = [WAITTAG(["hk", "ur"]), WAITDS()]
        o += self.reads(0)
        for r in range(8):
            mf = self.mfmas(r)
            side = {}
            if r < 7:
                rd = self.reads(r + 1)
                n = len(mf)
                for k, x in enumerate(rd):
                    side.setdefault(2 + (k * (n - 6)) // len(rd), []).append(x)
            o += interleave(mf, side)
        return o

    def out(self, s_wave, vlane):
        o = []
        A = lambda t, tag=None: o.append(I(t, tag))
        T0, T1, T2, VT = self.T0, self.T1, self.T2, self.VT
        A(f"v_and_b32 v{VT}, 15, v{vlane}")
        A(f"v_lshrrev_b32 v{VT+1}, 4, v{vlane}")
        A(f"v_lshlrev_b32 v{VT+2}, 5, v{VT}")
        A(f"v_lshl_add_u32 v{VT+2}, v{VT+1}, 3, v{VT+2}")
        A(f"v_add_u32 v{VT+2}, s{self.SL}, v{VT+2}")
        for c in range(8):
            a = self.ACC + 4 * c
            A(f"v_cvt_pk_bf16_f32 v{a}, v{a}, v{a+1}")
            A(f"v_cvt_pk_bf16_f32 v{a+1}, v{a+2}, v{a+3}")
            A(f"ds_write_b64 v{VT+2}, v[{a}:{a+1}] offset:{c*512}")
        A(f"v_bfe_u32 v{VT}, v{vlane}, 2, 2")
        A(f"v_mul_u32_u24 v{VT}, {CW}, v{VT}")
        A(f"v_lshl_add_u32 v{VT}, v{VT+1}, 6, v{VT}")
        A(f"v_and_b32 v{VT+1}, 3, v{vlane}")
        A(f"v_lshl_add_u32 v{VT}, v{VT+1}, 3, v{VT}")
        A(f"s_lshl_b32 s{T1}, s{s_wave}, 10")
        if self.lb:
            A(f"s_add_u32 s{T1}, s{T1}, {self.lb}")
        A(f"v_add_u32 v{VT}, s{T1}, v{VT}")
        A(f"v_lshlrev_b32 v{VT+1}, 4, v{vlane}")
        A(f"s_lshl_b32 s{T1}, s2, 14")
        A(f"s_lshl_b32 s{T2}, s{s_wave}, 12")
        A(f"s_add_u32 s{T1}, s{T1}, s{T2}")
        o.append(WAITDS())
        A("s_barrier")
        for m in range(4):
            a = self.ACC + 4 * m
            A(f"ds_read_b64_tr_b16 v[{a}:{a+1}], v{VT} offset:{256*m}")
            A(f"ds_read_b64_tr_b16 v[{a+2}:{a+3}], v{VT} offset:{256*m+32}")
        for m in range(4):
            a = self.ACC + 4 * m
            A(f"buffer_store_dwordx4 v[{a}:{a+3}], v{VT+1}, s[{self.SY}:{self.SY+3}], s{T1} offen offset:{m*1024} {self.store_mod}", tag="y2st")
        return o

    def build(self):
        o = []
        A = lambda t: o.append(I(t))
        A("s_cmp_ge_u32 s2, 256")
        A(f"s_cbranch_scc1 L_{self.name}_done")
        if self.prof:
            A("s_memtime s[64:65]"); A("s_memrealtime s[92:93]")
        A(f"s_load_dwordx4 s[4:7], s[0:1], {KARG['ssmk']}")
        A(f"s_load_dwordx2 s[14:15], s[0:1], {KARG['ws']}")
        A("v_lshrrev_b32 v1, 6, v0")
        A("v_and_b32 v2, 63, v0")
        A("v_readfirstlane_b32 s20, v1")
        A("s_waitcnt lgkmcnt(0)")
        sp = dict(ssmk=4, ssmd=6, ws=14)
        o += self.loads_hk(20, 2, sp) + self.loads_ur(20, 2) + self.prep(20, 2)
        if self.prof:
            o.append(WAITTAG(["hk", "ur"])); A("s_memtime s[66:67]"); A("s_waitcnt lgkmcnt(0)")
        o += self.main()
        if self.prof:
            A("s_memtime s[68:69]")
        o += self.out(20, 2)
        A("s_waitcnt vmcnt(0)")
        if self.prof:
            A("s_memtime s[70:71]")
            o += prof_out(64, 14, 20, 48)
        o, _ = fix_m0(o)
        o, st = insert_waits(o)
        o, _ = pad_hazards(o)
        return "\n".join(kernel_header(self.name)) + "\n" + text_of(o) + f"\nL_{self.name}_done:\n    s_endpgm\n"


def prof_out(st, sws, s_wave, tmp, slot=0):
    o = []
    A = lambda t: o.append(I(t))
    A(f"s_memrealtime s[{st+30}:{st+31}]")
    A("s_waitcnt lgkmcnt(0)")
    o += srd(tmp, sws, 1 << 20, WS_PROF + slot * 131072)
    A(f"s_lshl_b32 s{tmp+4}, s2, 2")
    A(f"s_add_u32 s{tmp+4}, s{tmp+4}, s{s_wave}")
    A(f"s_lshl_b32 s{tmp+4}, s{tmp+4}, 7")
    A("v_mov_b32 v0, 0")
    A("s_mov_b64 exec, 1")
    for n in range(16):
        A(f"v_mov_b32 v2, s{st+2*n}")
        A(f"v_mov_b32 v3, s{st+2*n+1}")
        A(f"buffer_store_dwordx2 v[2:3], v0, s[{tmp}:{tmp+3}], s{tmp+4} offen offset:{n*8}")
    A("s_waitcnt vmcnt(0)")
    return o
```

```python
from asmlib import *

WS_H = 0
WS_H_SIZE = 16 * 32 * 28672
WS_PROF = 32 << 20
WS_SIZE = 268435456

KARG = dict(q=0, k=8, v=16, shift=24, ssmk=32, ssmd=40, bx=48, wg=56, wu=64, wd=72, gw=80, out=88, dbg=96, ws=104)


def srd(dst, src, size, off=0):
    o = []
    if off:
        o.append(I(f"s_add_u32 s{dst}, s{src}, {off}"))
        o.append(I(f"s_addc_u32 s{dst+1}, s{src+1}, 0"))
        o.append(I(f"s_and_b32 s{dst+1}, s{dst+1}, 0xffff"))
    else:
        o.append(I(f"s_mov_b32 s{dst}, s{src}"))
        o.append(I(f"s_and_b32 s{dst+1}, s{src+1}, 0xffff"))
    o.append(I(f"s_mov_b32 s{dst+2}, {size}"))
    o.append(I(f"s_mov_b32 s{dst+3}, 0x20000"))
    return o


def fix_m0(seq, cur=None):
    out = []
    for ins in seq:
        if ins.kind == "dma" and ins.arg is not None:
            if ins.arg != cur:
                cur = ins.arg
                sg, add, _ = cur
                w = I(f"s_mov_b32 m0, s{sg}") if add == 0 else I(f"s_add_u32 m0, s{sg}, {add}")
                if out and out[-1].kind in ("mfma", "ds", "valu") and not out[-1].pseudo:
                    out.insert(len(out) - 1, w)
                else:
                    out.append(w)
        elif ("m0", 0) in ins.wr:
            cur = None
        out.append(ins)
    return out, cur


def fold(steps, cnt_sgpr, label, period=2):
    txt = [text_of(s) for s in steps]
    n = len(steps)
    best = (0, 0)
    for st in range(0, n - period + 1):
        reps = 1
        while st + (reps + 1) * period <= n and all(txt[st + p] == txt[st + reps * period + p] for p in range(period)):
            reps += 1
        if reps > best[1]:
            best = (st, reps)
    st, reps = best
    out = []
    for s in steps[:st]:
        out += s
    if reps >= 2:
        out.append(I(f"s_mov_b32 s{cnt_sgpr}, {reps}"))
        out.append(I(f"{label}:"))
        body = []
        for p in range(period):
            body += steps[st + p]
        idx = max(i for i, x in enumerate(body) if x.kind == "mfma")
        body = body[:idx] + [I(f"s_sub_u32 s{cnt_sgpr}, s{cnt_sgpr}, 1"), I(f"s_cmp_lg_u32 s{cnt_sgpr}, 0")] + body[idx:]
        assert all(x.kind != "salu" or x.op.startswith("s_mov") or x.op in ("s_setprio",) for x in body[idx + 2:]), "scc clobbered"
        out += body
        out.append(I(f"s_cbranch_scc1 {label}"))
        rest = steps[st + reps * period:]
    else:
        rest = steps[st:]
    for s in rest:
        out += s
    return out, (st, reps)


class G1:
    def __init__(self, S=2, wpos=None, xpos=None, prof=False, store_mod="sc1", name="gemm1_kernel", l2pf=False):
        self.S = S
        self.prof = prof
        self.store_mod = store_mod
        self.name = name
        self.XB = 0
        self.WB = 65536
        self.lds = 65536 + S * 28672
        self.wpos = wpos or [(0, 96 + 6), (0, 104 + 6), (1, 6), (1, 14), (1, 22), (1, 30), (1, 38)]
        self.xpos = xpos or [46, 54, 62, 70, 74, 78, 86, 94]
        self.l2pf = l2pf

    def acc(self, i, jp):
        b = (jp * 4 + i) * 4
        return f"v[{b}:{b+3}]"

    def xf(self, buf, i, ks):
        b = buf * 32 + (i * 2 + ks) * 4
        return f"a[{b}:{b+3}]"

    def wf(self, slot, ks):
        b = 64 + slot * 8 + ks * 4
        return b

    VX = 224
    VW = 232
    VXR = 239
    VWR = 241
    VWL = 242
    VT = 243

    SX, SW, SH = 8, 12, 16
    S_WAVE, S_TT, S_FT = 20, 21, 22
    S_XK, S_WK = 23, 24
    S_XD, S_WD = 25, 26
    S_WR = 27
    S_CNT = 28
    S_T0, S_T1, S_T2 = 29, 30, 31
    S_C = 32
    S_PROF = 36
    S_ST = 40

    def stamp(self, n):
        if not self.prof:
            return []
        return [I(f"s_memtime s[{self.S_ST+2*n}:{self.S_ST+2*n+1}]")]

    def x_dma(self, step, mm):
        o = []
        o.append(I(f"buffer_load_dwordx4 v{self.VX+mm}, s[{self.SX}:{self.SX+3}], s{self.S_XK} offen offset:{(mm&3)*1024} lds", tag=("x", step)))
        o[-1].arg = (self.S_XD, (mm >> 2) * 4096, ("x", step))
        if mm == 7:
            o.append(I(f"s_add_u32 s{self.S_XK}, s{self.S_XK}, 128"))
            o.append(I(f"s_xor_b32 s{self.S_XD}, s{self.S_XD}, 8192"))
        return o

    def w_dma(self, step, mm):
        o = []
        o.append(I(f"buffer_load_dwordx4 v{self.VW+mm}, s[{self.SW}:{self.SW+3}], s{self.S_WK} offen offset:{(mm&3)*1024} lds", tag=("w", step)))
        o[-1].arg = (self.S_WD, (mm >> 2) * 4096, ("w", step))
        if mm == 6:
            o.append(I(f"s_add_u32 s{self.S_WK}, s{self.S_WK}, {64*7168}"))
            o += self.rot(self.S_WD, self.S_T2)
        return o

    def rot(self, s, base_s):
        if self.S == 2:
            return [I(f"s_xor_b32 s{s}, s{s}, s{base_s}")]
        return [I(f"s_add_u32 s{s}, s{s}, 28672"),
                I(f"s_cmp_ge_u32 s{s}, s{base_s}"),
                I(f"s_cselect_b32 s{self.S_T0}, {self.S*28672}, 0"),
                I(f"s_sub_u32 s{s}, s{s}, s{self.S_T0}")]

    def w_reads(self, jp, slot, step=None):
        o = []
        for ks in range(2):
            for hf in range(2):
                b = self.wf(slot, ks) + 2 * hf
                off = (jp & 1) * 14336 + ks * 7168 + hf * 1792 + (jp >> 1) * 32
                o.append(I(f"ds_read_b64_tr_b16 a[{b}:{b+1}], v{self.VWR} offset:{off}", tag=("wr", step, jp)))
        return o

    def x_reads(self, step):
        o = []
        buf = step & 1
        for i in range(4):
            for ks in range(2):
                o.append(I(f"ds_read_b128 {self.xf(buf, i, ks)}, v{self.VXR+ks} offset:{(step&1)*8192 + i*2048}", tag=("xr", step)))
        return o

    def w_adv(self):
        if self.S == 2:
            o = [I(f"s_xor_b32 s{self.S_WR}, s{self.S_WR}, s{self.S_T1}")]
        else:
            o = [I(f"s_add_u32 s{self.S_WR}, s{self.S_WR}, 28672"),
                 I(f"s_cmp_ge_u32 s{self.S_WR}, {self.WB + self.S*28672}"),
                 I(f"s_cselect_b32 s{self.S_WR}, {self.WB}, s{self.S_WR}")]
        o.append(I(f"v_add_u32 v{self.VWR}, s{self.S_WR}, v{self.VWL}"))
        return o

    def setup(self):
        o = []
        A = lambda t, tag=None: o.append(I(t, tag))
        A("s_cmp_ge_u32 s2, 256")
        A(f"s_cbranch_scc1 L_{self.name}_done")
        o += self.stamp(0)
        if self.prof:
            A(f"s_memrealtime s[{self.S_ST+2*14}:{self.S_ST+2*14+1}]")
        A(f"s_load_dwordx2 s[4:5], s[0:1], {KARG['q']}")
        A(f"s_load_dwordx4 s[72:75], s[0:1], {KARG['wg']}")
        A(f"s_load_dwordx2 s[6:7], s[0:1], {KARG['ws']}")
        A("v_lshrrev_b32 v1, 6, v0")
        A("v_and_b32 v2, 63, v0")
        A(f"v_readfirstlane_b32 s{self.S_WAVE}, v1")
        A(f"s_and_b32 s{self.S_T0}, s2, 7")
        A(f"s_lshr_b32 s{self.S_T1}, s2, 3")
        A(f"s_and_b32 s{self.S_TT}, s{self.S_T1}, 3")
        A(f"s_and_b32 s{self.S_T2}, s{self.S_T0}, 1")
        A(f"s_lshl_b32 s{self.S_T2}, s{self.S_T2}, 2")
        A(f"s_add_u32 s{self.S_TT}, s{self.S_TT}, s{self.S_T2}")
        A(f"s_lshr_b32 s{self.S_FT}, s{self.S_T1}, 2")
        A(f"s_lshr_b32 s{self.S_T2}, s{self.S_T0}, 1")
        A(f"s_lshl_b32 s{self.S_T2}, s{self.S_T2}, 3")
        A(f"s_add_u32 s{self.S_FT}, s{self.S_FT}, s{self.S_T2}")
        A(f"s_lshl_b32 s{self.S_T0}, s{self.S_TT}, 8")
        A(f"s_lshl_b32 s{self.S_T1}, s{self.S_WAVE}, 6")
        A(f"s_add_u32 s{self.S_T0}, s{self.S_T0}, s{self.S_T1}")
        A(f"s_lshl_b32 s{self.S_T0}, s{self.S_T0}, 11")
        A("v_lshrrev_b32 v3, 3, v2")
        A("v_lshlrev_b32 v3, 11, v3")
        A(f"v_add_u32 v3, s{self.S_T0}, v3")
        A("v_and_b32 v4, 7, v2")
        A("v_lshrrev_b32 v5, 4, v2")
        A("v_xor_b32 v4, v4, v5")
        A("v_xor_b32 v6, 4, v4")
        A("v_lshl_add_u32 v4, v4, 4, v3")
        A("v_lshl_add_u32 v6, v6, 4, v3")
        for mm in range(8):
            A(f"v_add_u32 v{self.VX+mm}, {mm*16384 - (mm&3)*1024}, v{4 if mm % 2 == 0 else 6}")
        A(f"s_and_b32 s{self.S_T0}, s{self.S_WAVE}, 1")
        A(f"s_mul_i32 s{self.S_T0}, s{self.S_T0}, 448")
        A(f"s_mul_i32 s{self.S_T1}, s{self.S_FT}, 224")
        A(f"s_movk_i32 s{self.S_T2}, 4682")
        A(f"s_movk_i32 s{self.S_C}, 7168")
        for mm in range(7):
            A(f"v_add_u32 v3, s{self.S_T0}, v2")
            if mm:
                A(f"v_add_u32 v3, {64*mm}, v3")
            A(f"v_mul_u32_u24 v4, s{self.S_T2}, v3")
            A("v_lshrrev_b32 v4, 16, v4")
            A("v_mul_u32_u24 v5, 14, v4")
            A("v_sub_u32 v5, v3, v5")
            A("v_and_b32 v6, 4, v4")
            A("v_and_b32 v7, 8, v4")
            A("v_and_b32 v4, 0x33, v4")
            A("v_lshl_add_u32 v4, v6, 1, v4")
            A("v_lshrrev_b32 v7, 1, v7")
            A("v_add_u32 v4, v4, v7")
            A(f"v_mul_u32_u24 v4, s{self.S_C}, v4")
            A("v_lshl_add_u32 v4, v5, 4, v4")
            A(f"v_add_u32 v4, s{self.S_T1}, v4")
            A(f"v_subrev_u32 v{self.VW+mm}, {(mm&3)*1024}, v4")
        A("v_and_b32 v3, 15, v2")
        A("v_lshrrev_b32 v4, 4, v2")
        A("v_lshrrev_b32 v5, 1, v3")
        A("v_xor_b32 v4, v4, v5")
        A("v_lshlrev_b32 v4, 4, v4")
        A("v_lshl_add_u32 v4, v3, 7, v4")
        A(f"s_lshl_b32 s{self.S_XD}, s{self.S_WAVE}, 14")
        if self.XB:
            A(f"s_add_u32 s{self.S_XD}, s{self.S_XD}, {self.XB}")
        A(f"v_add_u32 v{self.VXR}, s{self.S_XD}, v4")
        A(f"v_xor_b32 v{self.VXR+1}, 64, v{self.VXR}")
        A("v_lshrrev_b32 v3, 5, v2")
        A("v_lshlrev_b32 v3, 4, v3")
        A("v_bfe_u32 v4, v2, 4, 1")
        A("v_lshl_add_u32 v3, v4, 2, v3")
        A("v_bfe_u32 v4, v2, 2, 2")
        A("v_add_u32 v3, v3, v4")
        A("v_mul_u32_u24 v3, 224, v3")
        A("v_and_b32 v4, 3, v2")
        A(f"v_lshl_add_u32 v{self.VWL}, v4, 3, v3")
        A(f"s_mov_b32 s{self.S_WR}, {self.WB}")
        A(f"v_add_u32 v{self.VWR}, s{self.S_WR}, v{self.VWL}")
        A(f"s_mul_i32 s{self.S_WD}, s{self.S_WAVE}, 7168")
        A(f"s_add_u32 s{self.S_WD}, s{self.S_WD}, {self.WB}")
        if self.S == 2:
            A(f"s_add_u32 s{self.S_T2}, s{self.S_WD}, 28672")
            A(f"s_xor_b32 s{self.S_T2}, s{self.S_T2}, s{self.S_WD}")
            A(f"s_mov_b32 s{self.S_T1}, {self.WB ^ (self.WB + 28672)}")
        else:
            A(f"s_add_u32 s{self.S_T2}, s{self.S_WD}, {self.S*28672}")
        A(f"s_mov_b32 s{self.S_XK}, 0")
        A(f"s_mov_b32 s{self.S_WK}, 0")
        A("s_waitcnt lgkmcnt(0)")
        o += srd(self.SX, 4, 2048 * 2048)
        A(f"s_cmp_ge_u32 s{self.S_WAVE}, 2")
        A("s_cselect_b32 s72, s74, s72")
        A("s_cselect_b32 s73, s75, s73")
        o += srd(self.SW, 72, 1024 * 7168)
        o += srd(self.SH, 6, WS_H_SIZE, WS_H)
        if self.prof:
            o += srd(self.S_PROF, 6, 1 << 20, WS_PROF)
        return o

    def prologue(self):
        o = []
        for mm in range(8):
            o += self.x_dma(0, mm)
        for mm in range(7):
            o += self.w_dma(0, mm)
        for mm in range(8):
            o += self.x_dma(1, mm)
        for st in range(1, self.S):
            nw = 7 if st < self.S - 1 else sum(1 for (so, g) in self.wpos if so == 0)
            for mm in range(nw):
                o += self.w_dma(st, mm)
        for r in range(224):
            o.append(I(f"v_mov_b32 v{r}, 0"))
        o += self.stamp(1)
        o.append(WAITTAG([("x", 0), ("w", 0)]))
        o.append(I("s_barrier"))
        o += self.stamp(2)
        o += self.x_reads(0)
        o += self.w_reads(0, 0, 0)
        o += self.w_reads(1, 1, 0)
        o.append(WAITDS(("xr", 0)))
        for mm in range(8):
            o += self.x_dma(2, mm)
        return o

    def step(self, i, nsteps=16):
        mf = []
        side = {}
        add = lambda g, l: side.setdefault(g, []).extend(l)
        for jp in range(14):
            slot = (i * 14 + jp) % 4
            for ii in range(4):
                for ks in range(2):
                    b = self.wf(slot, ks)
                    mf.append(I(f"v_mfma_f32_16x16x32_bf16 {self.acc(ii, jp)}, a[{b}:{b+3}], {self.xf(i & 1, ii, ks)}, {self.acc(ii, jp)}"))
        last = (i == nsteps - 1)
        for jp in range(14):
            if jp <= 9:
                for n, r in enumerate(self.w_reads(jp + 2, (i * 14 + jp + 2) % 4, i)):
                    add(8 * jp + n, [r])
            elif jp == 10:
                rs = self.w_reads(12, (i * 14 + 12) % 4, i) + self.w_reads(13, (i * 14 + 13) % 4, i)
                for n, r in enumerate(rs):
                    add(8 * jp + n, [r])
            elif jp >= 12 and not last:
                for n, r in enumerate(self.w_reads(jp - 12, (i * 14 + jp + 2) % 4, i + 1)):
                    add(8 * jp + 1 + n, [r])
        if not last:
            add(95, [WAITDS(), WAITTAG(("w", i + 1))] + self.w_adv())
            side[96] = [I("s_barrier")] + side.get(96, [])
            xr = self.x_reads(i + 1)
            add(8 + 3, [WAITTAG(("x", i + 1))])
            for n, r in enumerate(xr):
                add(8 * (1 + n // 2) + 4 + (n % 2), [r])
            if i + 3 < nsteps:
                add(self.xpos[0] - 1, [WAITDS(("xr", i + 1))])
                for mm in range(8):
                    add(self.xpos[mm], self.x_dma(i + 3, mm))
        for mm, (so, g) in enumerate(self.wpos):
            st = i + self.S - so
            if st < nsteps:
                add(g, self.w_dma(st, mm))
        for jp in range(14):
            add(8 * jp - 1, [WAITDS(("wr", i, jp))])
        return interleave(mf, side)

    def epilogue(self):
        o = []
        A = lambda t, tag=None: o.append(I(t, tag))
        o += self.stamp(3)
        A(f"s_lshl_b32 s{self.S_T0}, s{self.S_TT}, 1")
        A(f"s_lshr_b32 s{self.S_T1}, s{self.S_WAVE}, 1")
        A(f"s_add_u32 s{self.S_T0}, s{self.S_T0}, s{self.S_T1}")
        A(f"s_lshl_b32 s{self.S_T0}, s{self.S_T0}, 5")
        A(f"s_add_u32 s{self.S_T0}, s{self.S_T0}, s{self.S_FT}")
        A(f"s_mul_i32 s{self.S_T0}, s{self.S_T0}, 28672")
        A(f"s_and_b32 s{self.S_T1}, s{self.S_WAVE}, 1")
        A(f"s_lshl_b32 s{self.S_T2}, s{self.S_T1}, 11")
        A(f"s_lshl_b32 s{self.S_T1}, s{self.S_T1}, 12")
        A(f"s_add_u32 s{self.S_T2}, s{self.S_T2}, s{self.S_T0}")
        A(f"s_add_u32 s{self.S_T2}, s{self.S_T2}, 24576")
        A(f"s_add_u32 s{self.S_T0}, s{self.S_T0}, s{self.S_T1}")
        A(f"s_mov_b32 s{self.S_C}, 0xbfb8aa3b")
        A(f"s_mov_b32 s{self.S_C+1}, 0xbfb8aa3b")
        VA = 224
        A(f"v_mbcnt_lo_u32_b32 v{VA}, -1, 0")
        A(f"v_mbcnt_hi_u32_b32 v{VA}, -1, v{VA}")
        A(f"v_lshlrev_b32 v{VA}, 4, v{VA}")
        T = 228

        def silu(i, j, tset, outreg):
            g = ((2 * j) * 4 + i) * 4
            u = ((2 * j + 1) * 4 + i) * 4
            t = T + 4 * tset
            c = self.S_C
            return [
                [I(f"v_pk_mul_f32 v[{t}:{t+1}], v[{g}:{g+1}], s[{c}:{c+1}]"), I(f"v_pk_mul_f32 v[{t+2}:{t+3}], v[{g+2}:{g+3}], s[{c}:{c+1}]")],
                [I(f"v_exp_f32 v{t+q}, v{t+q}") for q in range(4)],
                [I(f"v_pk_add_f32 v[{t}:{t+1}], v[{t}:{t+1}], 1.0 op_sel_hi:[1,0]"), I(f"v_pk_add_f32 v[{t+2}:{t+3}], v[{t+2}:{t+3}], 1.0 op_sel_hi:[1,0]"),
                 I(f"v_pk_mul_f32 v[{g}:{g+1}], v[{g}:{g+1}], v[{u}:{u+1}]"), I(f"v_pk_mul_f32 v[{g+2}:{g+3}], v[{g+2}:{g+3}], v[{u+2}:{u+3}]")],
                [I(f"v_rcp_f32 v{t+q}, v{t+q}") for q in range(4)],
                [I(f"v_pk_mul_f32 v[{t}:{t+1}], v[{t}:{t+1}], v[{g}:{g+1}]"), I(f"v_pk_mul_f32 v[{t+2}:{t+3}], v[{t+2}:{t+3}], v[{g+2}:{g+3}]")],
                [I(f"v_cvt_pk_bf16_f32 v{outreg}, v{t}, v{t+1}"), I(f"v_cvt_pk_bf16_f32 v{outreg+1}, v{t+2}, v{t+3}")],
            ]
        n = 0
        for p in range(3):
            for i in range(4):
                outb = 244 + 4 * (n & 1)
                a = silu(i, 2 * p, 0, outb)
                b = silu(i, 2 * p + 1, 1, outb + 2)
                for x, y in zip(a, b):
                    o += x + y
                A(f"buffer_store_dwordx4 v[{outb}:{outb+3}], v{VA}, s[{self.SH}:{self.SH+3}], s{self.S_T0} offen offset:{i*1024} {self.store_mod}", tag="hst")
                n += 1
            A(f"s_add_u32 s{self.S_T0}, s{self.S_T0}, 8192")
        for ip in range(2):
            outb = 244 + 4 * (n & 1)
            a = silu(2 * ip, 6, 0, outb)
            b = silu(2 * ip + 1, 6, 1, outb + 2)
            for x, y in zip(a, b):
                o += x + y
            A(f"buffer_store_dwordx4 v[{outb}:{outb+3}], v{VA}, s[{self.SH}:{self.SH+3}], s{self.S_T2} offen offset:{ip*1024} {self.store_mod}", tag="hst")
            n += 1
        o += self.stamp(4)
        A("s_waitcnt vmcnt(0)")
        o += self.stamp(5)
        return o

    def prof_out(self):
        if not self.prof:
            return []
        o = []
        A = lambda t: o.append(I(t))
        A(f"s_memrealtime s[{self.S_ST+2*15}:{self.S_ST+2*15+1}]")
        A("s_waitcnt lgkmcnt(0)")
        A(f"s_lshl_b32 s{self.S_T0}, s2, 2")
        A(f"s_add_u32 s{self.S_T0}, s{self.S_T0}, s{self.S_WAVE}")
        A(f"s_lshl_b32 s{self.S_T0}, s{self.S_T0}, 7")
        A("v_mov_b32 v0, 0")
        A("s_mov_b64 exec, 1")
        for n in range(16):
            A(f"v_mov_b32 v2, s{self.S_ST+2*n}")
            A(f"v_mov_b32 v3, s{self.S_ST+2*n+1}")
            A(f"buffer_store_dwordx2 v[2:3], v0, s[{self.S_PROF}:{self.S_PROF+3}], s{self.S_T0} offen offset:{n*8}")
        A("s_waitcnt vmcnt(0)")
        return o

    def build(self):
        st = State()
        head = self.setup() + self.prologue()
        head, m0 = fix_m0(head)
        head, st = insert_waits(head, st)
        head, _ = pad_hazards(head)
        steps = []
        prev = head
        for i in range(16):
            s, m0 = fix_m0(self.step(i), m0)
            s, st = insert_waits(s, st)
            s, npad = pad_hazards(s, pre=prev[-40:])
            steps.append(s)
            prev = s
        body, info = fold(steps, self.S_CNT, f"L_{self.name}_loop")
        tail, st = insert_waits(self.epilogue() + self.prof_out(), st)
        tail, _ = pad_hazards(tail, pre=prev[-40:])
        self.info = info
        lines = kernel_header(self.name)
        return "\n".join(lines) + "\n" + text_of(head + body + tail) + f"\nL_{self.name}_done:\n    s_endpgm\n"


def wrap(kernels, launches):
    out = []
    for (n, g, b, l) in launches:
        out.append(f"; @launch kernel={n} grid=({g},1,1) block=({b},1,1) lds={l}")
    out.append('.amdgcn_target "amdgcn-amd-amdhsa--gfx950"')
    out.append(".text")
    for (n, t, v) in kernels:
        out.append(t)
    out.append('.section .rodata,"a"')
    for (n, t, v) in kernels:
        out.append(".p2align 6")
        out.append(kernel_desc(n, *v))
    return "\n".join(out) + "\n"


if __name__ == "__main__":
    g = G1(S=2, prof=True)
    t = g.build()
    print(g.info)
    open("g1.s", "w").write(wrap([(g.name, t, (512, 102, 256))], [(g.name, 256, 256, g.lds)]))
```

```python
from asmlib import *
from gemm1 import srd, KARG, WS_PROF, WS_H, WS_H_SIZE, fix_m0
from pre import *
from conv import prof_out


def ksteps():
    out = []
    for sg in range(2):
        for t in range(4):
            for p in range(3):
                out.append(('r', 4 * sg + t, p))
        out.append(('s', 4 * sg))
        out.append(('s', 4 * sg + 2))
    return out


class G2:
    def __init__(self, name="gemm2_kernel", NB=8, P=0, lb=0, wstride=36864, prof=False, hmod="sc1", sb=8):
        self.name = name
        self.NB = NB
        self.P = P
        self.lb = lb
        self.wstride = wstride
        self.lds = lb + 4 * wstride
        self.prof = prof
        self.hmod = hmod
        self.ks = ksteps()
        self.SH, self.SW, self.SQ, self.SO, self.SY, self.SG = sb, sb + 4, sb + 8, sb + 12, sb + 16, sb + 20
        b = sb + 24
        self.S_HB = b
        self.S_H0, self.S_H1 = b + 1, b + 2
        self.S_PO = b + 3
        self.S_OO = b + 7
        self.S_WB = b + 11
        self.S_W0 = b + 12
        self.S_L = b + 13
        self.S_TH, self.S_DB = b + 14, b + 15
        self.T0, self.T1, self.T2 = b + 16, b + 17, b + 18
        self.send = b + 19
        self.pre_regs = [("a", 160 + 16 * n) for n in range(6)] + [("v", 176 + 16 * n) for n in range(5)]

    VL16 = 160
    VWD = 161
    VWR = 165
    VT = 169

    def hf(self, n, i, ks):
        b = (n & 1) * 64 + (i * 2 + ks) * 4
        return b

    def acc(self, i, j):
        if i < 2:
            b = 128 + (i * 4 + j) * 4
            return f"v[{b}:{b+3}]"
        b = ((i - 2) * 4 + j) * 4
        return f"a[{b}:{b+3}]"

    def wreg(self, blk, j):
        if blk < self.P:
            f, b = self.pre_regs[blk]
            return f, b + 4 * j
        n, ks = blk // 2, blk & 1
        return "a", 96 + (n & 1) * 32 + ks * 16 + 4 * j

    def slot(self, blk):
        return blk % self.NB

    def setup(self, s_wave, vlane, sptr):
        o = []
        A = lambda t, tag=None: o.append(I(t, tag))
        T0, T1, T2, VT = self.T0, self.T1, self.T2, self.VT
        A(f"s_and_b32 s{T0}, s2, 7")
        A(f"s_lshr_b32 s{T1}, s2, 3")
        A(f"s_and_b32 s{self.S_TH}, s{T1}, 3")
        A(f"s_and_b32 s{T2}, s{T0}, 3")
        A(f"s_lshl_b32 s{T2}, s{T2}, 2")
        A(f"s_add_u32 s{self.S_TH}, s{self.S_TH}, s{T2}")
        A(f"s_lshr_b32 s{self.S_DB}, s{T1}, 2")
        A(f"s_lshr_b32 s{T2}, s{T0}, 2")
        A(f"s_lshl_b32 s{T2}, s{T2}, 3")
        A(f"s_add_u32 s{self.S_DB}, s{self.S_DB}, s{T2}")
        o += srd(self.SH, sptr['ws'], WS_H_SIZE, WS_H)
        o += srd(self.SW, sptr['wd'], 3584 * 2048)
        o += srd(self.SQ, sptr['q'], 2048 * 2048)
        o += srd(self.SO, sptr['out'], 2048 * 2048)
        o += srd(self.SY, sptr['ws'], WS_Y2_SIZE, WS_Y2)
        o += srd(self.SG, sptr['ws'], WS_G_SIZE, WS_G)
        A(f"s_lshl_b32 s{T0}, s{self.S_TH}, 2")
        A(f"s_add_u32 s{T0}, s{T0}, s{s_wave}")
        A(f"s_mul_i32 s{self.S_HB}, s{T0}, {8*28672}")
        for m in range(4):
            A(f"s_add_u32 s{T0}, s{s_wave}, {m}")
            A(f"s_and_b32 s{T0}, s{T0}, 3")
            A(f"s_lshl_b32 s{self.S_PO+m}, s{T0}, 11")
            A(f"s_lshl_b32 s{self.S_OO+m}, s{T0}, 10")
            A(f"s_add_u32 s{self.S_PO+m}, s{self.S_PO+m}, s{self.S_HB}")
            A(f"s_add_u32 s{self.S_OO+m}, s{self.S_OO+m}, s{self.S_HB}")
        A(f"s_mul_i32 s{self.S_WB}, s{s_wave}, {896*2048}")
        A(f"s_lshl_b32 s{T0}, s{self.S_DB}, 7")
        A(f"s_add_u32 s{self.S_WB}, s{self.S_WB}, s{T0}")
        A(f"s_mul_i32 s{self.S_L}, s{s_wave}, {self.wstride}")
        if self.lb:
            A(f"s_add_u32 s{self.S_L}, s{self.S_L}, {self.lb}")
        A(f"v_lshlrev_b32 v{self.VL16}, 4, v{vlane}")
        A(f"v_lshrrev_b32 v{VT}, 3, v{vlane}")
        A(f"v_and_b32 v{VT+1}, 6, v{VT}")
        A(f"v_and_b32 v{VT+2}, 7, v{vlane}")
        A(f"v_xor_b32 v{VT+1}, v{VT+1}, v{VT+2}")
        A(f"v_lshlrev_b32 v{VT}, 11, v{VT}")
        A(f"v_lshl_add_u32 v{self.VWD}, v{VT+1}, 4, v{VT}")
        for m in range(1, 4):
            A(f"v_add_u32 v{self.VWD+m}, {m*(16384-1024)}, v{self.VWD}")
        A(f"v_lshrrev_b32 v{VT}, 2, v{vlane}")
        A(f"v_bfe_u32 v{VT+1}, v{vlane}, 3, 2")
        A(f"v_and_b32 v{VT+2}, 3, v{vlane}")
        A(f"v_lshlrev_b32 v{VT}, 7, v{VT}")
        A(f"v_lshl_add_u32 v{VT}, v{VT+2}, 3, v{VT}")
        A(f"v_add_u32 v{VT}, s{self.S_L}, v{VT}")
        for j in range(4):
            A(f"v_xor_b32 v{VT+2}, {j}, v{VT+1}")
            A(f"v_lshl_add_u32 v{self.VWR+j}, v{VT+2}, 5, v{VT}")
        return o

    def w_dma(self, blk):
        k = self.ks[blk]
        out = []
        for m in range(4):
            g = []
            if k[0] == 'r':
                if m == 0:
                    g.append(I(f"s_add_u32 s{self.S_W0}, s{self.S_WB}, {(k[1]*112 + 32*k[2])*2048}"))
            else:
                if m == 0:
                    g.append(I(f"s_add_u32 s{self.S_W0}, s{self.S_WB}, {(k[1]*112 + 96)*2048}"))
                if m == 2:
                    g.append(I(f"s_add_u32 s{self.S_W0}, s{self.S_WB}, {((k[1]+1)*112 + 96 - 16)*2048}"))
            i = I(f"buffer_load_dwordx4 v{self.VWD+m}, s[{self.SW}:{self.SW+3}], s{self.S_W0} offen offset:{m*1024} lds", tag=("wd", blk))
            i.arg = (self.S_L, self.slot(blk) * 4096, ("wd", blk))
            g.append(i)
            out.append(g)
        return out

    def w_reads(self, blk):
        out = []
        for j in range(4):
            f, b = self.wreg(blk, j)
            for hf in range(2):
                out.append(I(f"ds_read_b64_tr_b16 {f}[{b+2*hf}:{b+2*hf+1}], v{self.VWR+j} offset:{self.slot(blk)*4096 + hf*2048}", tag=("wdr", blk)))
        return out

    def h_load(self, n, i, ks):
        k = self.ks[2 * n + ks]
        m = i >> 1
        b = self.hf(n, i, ks)
        sreg = self.S_H0 + ks
        g = []
        if k[0] == 'r':
            if (i & 1) == 0:
                g.append(I(f"s_add_u32 s{sreg}, s{self.S_PO+m}, {k[1]*28672 + k[2]*8192}"))
            off = (i & 1) * 1024
        else:
            g.append(I(f"s_add_u32 s{sreg}, s{self.S_OO+m}, {(k[1] + (i & 1))*28672 + 24576}"))
            off = 0
        g.append(I(f"buffer_load_dwordx4 v[{b}:{b+3}], v{self.VL16}, s[{self.SH}:{self.SH+3}], s{sreg} offen offset:{off} {self.hmod}", tag=("h", n)))
        return g

    def swaps(self, n, m):
        g = []
        for ks in range(2):
            x = self.hf(n, 2 * m, ks); y = self.hf(n, 2 * m + 1, ks)
            g.append(I(f"v_swap_b32 v{x+2}, v{y}"))
            g.append(I(f"v_swap_b32 v{x+3}, v{y+1}"))
        return g

    def epi_loads(self, s_wave, vlane):
        o = []
        A = lambda t, tag=None: o.append([I(t, tag)])
        T0, T1, T2 = self.T0, self.T1, self.T2
        VQ, VY, VG = 36, 37, 38
        self.VQ = VQ
        A(f"v_and_b32 v{VG}, 15, v{vlane}")
        A(f"v_bfe_u32 v{VY}, v{vlane}, 4, 1")
        A(f"v_lshrrev_b32 v39, 5, v{vlane}")
        A(f"v_lshl_add_u32 v39, v{VY}, 1, v39")
        A(f"v_lshlrev_b32 v{VQ}, 11, v{VG}")
        A(f"v_lshl_add_u32 v{VQ}, v39, 4, v{VQ}")
        A(f"v_lshlrev_b32 v{VY}, 15, v39")
        A(f"v_lshl_add_u32 v{VY}, v{VG}, 4, v{VY}")
        A(f"v_lshlrev_b32 v{VG}, 3, v{VG}")
        A(f"s_lshl_b32 s{T0}, s{self.S_TH}, 2")
        A(f"s_add_u32 s{T0}, s{T0}, s{s_wave}")
        A(f"s_lshl_b32 s{T1}, s{T0}, 8")
        A(f"buffer_load_dwordx2 v[32:33], v{VG}, s[{self.SG}:{self.SG+3}], s{T1} offen {self.hmod}", tag="epi")
        A(f"buffer_load_dwordx2 v[34:35], v{VG}, s[{self.SG}:{self.SG+3}], s{T1} offen offset:128 {self.hmod}", tag="epi")
        A(f"s_lshl_b32 s{T2}, s{self.S_DB}, 18")
        A(f"s_add_u32 s{T1}, s{T1}, s{T2}")
        for jj in range(2):
            for hh in range(2):
                A(f"s_add_u32 s{T2}, s{T1}, {(8*jj + hh)*16384}")
                r = 16 + (jj * 2 + hh) * 4
                A(f"buffer_load_dwordx4 v[{r}:{r+3}], v{VY}, s[{self.SY}:{self.SY+3}], s{T2} offen {self.hmod}", tag="epi")
        A(f"s_lshl_b32 s{T0}, s{T0}, 16")
        A(f"s_lshl_b32 s{T2}, s{self.S_DB}, 7")
        A(f"s_add_u32 s{T0}, s{T0}, s{T2}")
        A(f"s_add_u32 s{T1}, s{T0}, 32768")
        for ii in range(2):
            for jj in range(2):
                r = (ii * 2 + jj) * 4
                A(f"buffer_load_dwordx4 v[{r}:{r+3}], v{VQ}, s[{self.SQ}:{self.SQ+3}], s{T0+ii} offen offset:{jj*64}", tag="epi")
        return o

    def dstep(self, n, s_wave, vlane, first=False):
        mf = []
        side = {}
        add = lambda g, l: side.setdefault(g, []).extend(l)
        strad = self.ks[2 * n][0] == 's'
        for i in range(8):
            for j in range(4):
                for ks in range(2):
                    f, b = self.wreg(2 * n + ks, j)
                    h = self.hf(n, i, ks)
                    c = "0" if (first and ks == 0) else self.acc(i, j)
                    mf.append(I(f"v_mfma_f32_16x16x32_bf16 {self.acc(i, j)}, {f}[{b}:{b+3}], v[{h}:{h+3}], {c}"))
            if n + 2 < 14:
                add(8 * i + 7, self.h_load(n + 2, i, 0))
                add(min(8 * i + 9, 63), self.h_load(n + 2, i, 1))
        if strad:
            add(-1, self.swaps(n, 0))
            for m in range(1, 4):
                sw = self.swaps(n, m)
                for q, x in enumerate(sw):
                    add(16 * m - 8 + q, [x])
        rd = []
        for ks in range(2):
            blk = 2 * (n + 1) + ks
            if blk < 28 and blk >= self.P:
                rd.append((blk, self.w_reads(blk)))
        g = 2
        for blk, rs in rd:
            add(g, [WAITTAG(("wd", blk))])
            for r in rs:
                add(g, [r]); g += 1
                if g % 8 == 7:
                    g += 1
        g = 34
        for blk, rs in rd:
            nb = blk + self.NB
            if nb < 28:
                add(g - 1, [WAITDS(("wdr", blk))])
                for grp in self.w_dma(nb):
                    add(g, grp); g += 3
        if n == 13:
            g = 0
            for grp in self.epi_loads(s_wave, vlane):
                add(g, grp); g += 1
        return interleave(mf, side)

    def prologue(self):
        o = []
        nxt = 0
        for blk in range(min(self.NB, 28)):
            for g in self.w_dma(blk):
                o += g
        nxt = self.NB
        for n in range(2):
            for i in range(8):
                for ks in range(2):
                    o += self.h_load(n, i, ks)
        for blk in range(max(self.P, 2)):
            o.append(WAITTAG(("wd", blk)))
            o += self.w_reads(blk)
            if nxt < 28:
                o.append(WAITDS(("wdr", blk)))
                for g in self.w_dma(nxt):
                    o += g
                nxt += 1
        return o

    def final(self, s_wave, vlane):
        o = []
        A = lambda t, tag=None: o.append(I(t, tag))
        T0, T1, T2, VT = self.T0, self.T1, self.T2, self.VT
        A(f"v_add_u32 v{VT}, s{self.S_L}, v{self.VL16}")
        for m in range(1, 4):
            for ii in range(2):
                for j in range(4):
                    A(f"ds_write_b128 v{VT}, {self.acc(2*m+ii, j)} offset:{((m-1)*8 + ii*4 + j)*1024}")
        GA = 64
        U = 40
        for ii in range(2):
            for jj in range(2):
                q = (ii * 2 + jj) * 4
                d = GA + (ii * 2 + jj) * 8
                for e in range(4):
                    y = 16 + (jj * 2 + (e >> 1)) * 4 + ii * 2 + (e & 1)
                    A(f"v_lshlrev_b32 v{d+2*e}, 16, v{q+e}")
                    A(f"v_and_b32 v{d+2*e+1}, 0xffff0000, v{q+e}")
                    A(f"v_lshlrev_b32 v{U+2*e}, 16, v{y}")
                    A(f"v_and_b32 v{U+2*e+1}, 0xffff0000, v{y}")
                for e in range(4):
                    A(f"v_pk_mul_f32 v[{d+2*e}:{d+2*e+1}], v[{d+2*e}:{d+2*e+1}], v[{U+2*e}:{U+2*e+1}]")
                for e in range(4):
                    A(f"v_pk_mul_f32 v[{d+2*e}:{d+2*e+1}], v[{d+2*e}:{d+2*e+1}], v[{32+2*ii}:{33+2*ii}] op_sel_hi:[1,0]")
        for m in range(1, 4):
            A(f"s_sub_u32 s{T2}, s{s_wave}, {m}")
            A(f"s_and_b32 s{T2}, s{T2}, 3")
            A(f"s_mul_i32 s{T2}, s{T2}, {self.wstride}")
            if self.lb:
                A(f"s_add_u32 s{T2}, s{T2}, {self.lb}")
            A(f"v_add_u32 v{VT+m}, s{T2}, v{self.VL16}")
        o.append(WAITDS())
        A("s_barrier")
        R = 96
        for m in range(1, 4):
            rb = (96, 0, 96)[m - 1]
            for r in range(8):
                A(f"ds_read_b128 v[{rb+4*r}:{rb+4*r+3}], v{VT+m} offset:{((m-1)*8 + r)*1024}")
            if m >= 2:
                pb = (96, 0, 96)[m - 2]
                for r in range(16):
                    A(f"v_pk_add_f32 v[{128+2*r}:{129+2*r}], v[{128+2*r}:{129+2*r}], v[{pb+2*r}:{pb+2*r+1}]")
                if m == 2:
                    pass
        for r in range(16):
            A(f"v_pk_add_f32 v[{128+2*r}:{129+2*r}], v[{128+2*r}:{129+2*r}], v[{96+2*r}:{97+2*r}]")
        for ii in range(2):
            for jj in range(2):
                x = 128 + (ii * 4 + 2 * jj) * 4
                for r in range(4):
                    A(f"v_permlane16_swap_b32 v{x+r}, v{x+4+r}")
        for ii in range(2):
            for jj in range(2):
                x = 128 + (ii * 4 + 2 * jj) * 4
                d = GA + (ii * 2 + jj) * 8
                for e in range(4):
                    A(f"v_pk_fma_f32 v[{x+2*e}:{x+2*e+1}], v[{x+2*e}:{x+2*e+1}], v[{32+2*ii}:{33+2*ii}], v[{d+2*e}:{d+2*e+1}] op_sel:[0,1,0] op_sel_hi:[1,1,1]")
                ob = U + (ii * 2 + jj) * 4
                for e in range(4):
                    A(f"v_cvt_pk_bf16_f32 v{ob+e}, v{x+2*e}, v{x+2*e+1}")
                A(f"buffer_store_dwordx4 v[{ob}:{ob+3}], v{self.VQ}, s[{self.SO}:{self.SO+3}], s{T0+ii} offen offset:{jj*64}")
        return o

    def build(self):
        o = []
        A = lambda t: o.append(I(t))
        A("s_cmp_ge_u32 s2, 256")
        A(f"s_cbranch_scc1 L_{self.name}_done")
        if self.prof:
            A("s_memtime s[64:65]"); A("s_memrealtime s[92:93]")
        A(f"s_load_dwordx2 s[4:5], s[0:1], {KARG['q']}")
        A(f"s_load_dwordx2 s[6:7], s[0:1], {KARG['wd']}")
        A(f"s_load_dwordx2 s[56:57], s[0:1], {KARG['out']}")
        A(f"s_load_dwordx2 s[58:59], s[0:1], {KARG['ws']}")
        A("v_lshrrev_b32 v1, 6, v0")
        A("v_and_b32 v175, 63, v0")
        A("v_readfirstlane_b32 s60, v1")
        A("s_waitcnt lgkmcnt(0)")
        sp = dict(q=4, wd=6, out=56, ws=58)
        o += self.setup(60, 175, sp) + self.prologue()
        if self.prof:
            o.append(WAITTAG(("h", 0))); A("s_memtime s[66:67]"); A("s_waitcnt lgkmcnt(0)")
        for n in range(14):
            o += self.dstep(n, 60, 175, first=(n == 0))
        if self.prof:
            A("s_memtime s[68:69]")
        o += self.final(60, 175)
        A("s_waitcnt vmcnt(0)")
        if self.prof:
            A("s_memtime s[70:71]")
            o += prof_out(64, 58, 60, 96 - 44, slot=2)
        o, _ = fix_m0(o)
        o, st = insert_waits(o)
        o, _ = pad_hazards(o)
        return "\n".join(kernel_header(self.name)) + "\n" + text_of(o) + f"\nL_{self.name}_done:\n    s_endpgm\n"
```

```python
from asmlib import *
from gemm1 import srd, KARG, WS_PROF

WS_UR = 16 << 20
WS_UR_SIZE = 4 << 20
WS_G = 20 << 20
WS_G_SIZE = 2048 * 8
WS_Y2 = 21 << 20
WS_Y2_SIZE = 4 << 20


class Pre:
    def __init__(self, name="pre_kernel", store_mod="sc1", vb=8, sb=40):
        self.name = name
        self.store_mod = store_mod
        self.vb = vb
        self.sb = sb

    def body(self, s_wave, vlane, sptr):
        vb, sb = self.vb, self.sb
        SK, SV, SS, SQ, SG, SU, SGO = sb, sb + 4, sb + 8, sb + 12, sb + 16, sb + 20, sb + 24
        T0, T1, T2 = sb + 28, sb + 29, sb + 30
        ld = []
        A = lambda t, tag=None: ld.append(I(t, tag))
        ld += srd(SK, sptr['k'], 2048 * 2048)
        ld += srd(SV, sptr['v'], 2048 * 2048)
        ld += srd(SS, sptr['shift'], 8192)
        ld += srd(SQ, sptr['q'], 2048 * 2048)
        ld += srd(SG, sptr['gw'], 2048)
        ld += srd(SU, sptr['ws'], WS_UR_SIZE, WS_UR)
        ld += srd(SGO, sptr['ws'], WS_G_SIZE, WS_G)
        K = vb
        V = K + 22
        SH = V + 16
        Q = SH + 8
        GW = Q + 16
        C = GW + 8
        KU = C + 16
        AC = KU + 16
        VU = AC + 32
        VA = VU + 4
        self.vend = VA + 6
        A(f"s_lshr_b32 s{T0}, s2, 4")
        A(f"s_lshl_b32 s{T0}, s{T0}, 2")
        A(f"s_add_u32 s{T0}, s{T0}, s{s_wave}")
        A(f"s_and_b32 s{T1}, s2, 15")
        A(f"v_lshrrev_b32 v{VA}, 4, v{vlane}")
        A(f"v_and_b32 v{VA+1}, 15, v{vlane}")
        A(f"s_lshl_b32 s{T2}, s{T0}, 16")
        A(f"v_lshlrev_b32 v{VA+2}, 14, v{VA}")
        A(f"v_lshl_add_u32 v{VA+2}, v{VA+1}, 3, v{VA+2}")
        A(f"v_add_u32 v{VA+2}, s{T2}, v{VA+2}")
        A(f"s_lshl_b32 s{T2}, s{T1}, 7")
        A(f"v_add_u32 v{VA+2}, s{T2}, v{VA+2}")
        self.kv_regs = (K, V, SH, Q, GW, C, KU, AC, VU, VA)
        for r in range(11):
            if r < 3:
                A(f"v_subrev_u32 v{VA+3}, {(3-r)*2048}, v{VA+2}")
                A(f"v_min_u32 v{VA+3}, 0x80000000, v{VA+3}")
                A(f"buffer_load_dwordx2 v[{K+2*r}:{K+2*r+1}], v{VA+3}, s[{SK}:{SK+3}], 0 offen", tag="pre")
            else:
                rr = r - 3
                A(f"s_mov_b32 s{T2}, {(rr // 2) * 4096}")
                A(f"buffer_load_dwordx2 v[{K+2*r}:{K+2*r+1}], v{VA+2}, s[{SK}:{SK+3}], s{T2} offen offset:{(rr % 2)*2048}", tag="pre")
        for r in range(8):
            A(f"s_mov_b32 s{T2}, {(r // 2) * 4096}")
            A(f"buffer_load_dwordx2 v[{V+2*r}:{V+2*r+1}], v{VA+2}, s[{SV}:{SV+3}], s{T2} offen offset:{(r % 2)*2048}", tag="pre")
        A(f"s_lshl_b32 s{T2}, s{T1}, 9")
        A(f"v_lshlrev_b32 v{VA+3}, 5, v{VA+1}")
        A(f"buffer_load_dwordx4 v[{SH}:{SH+3}], v{VA+3}, s[{SS}:{SS+3}], s{T2} offen", tag="pre")
        A(f"buffer_load_dwordx4 v[{SH+4}:{SH+7}], v{VA+3}, s[{SS}:{SS+3}], s{T2} offen offset:16", tag="pre")
        A(f"s_lshl_b32 s{T2}, s2, 2")
        A(f"s_add_u32 s{T2}, s{T2}, s{s_wave}")
        A(f"s_lshl_b32 s{T2}, s{T2}, 12")
        A(f"v_lshlrev_b32 v{VA+4}, 4, v{vlane}")
        for n in range(4):
            A(f"buffer_load_dwordx4 v[{Q+4*n}:{Q+4*n+3}], v{VA+4}, s[{SQ}:{SQ+3}], s{T2} offen offset:{n*1024}", tag="pre")
        for n in range(2):
            A(f"buffer_load_dwordx4 v[{GW+4*n}:{GW+4*n+3}], v{VA+4}, s[{SG}:{SG+3}], 0 offen offset:{n*1024}", tag="pre")
        A(f"s_sub_u32 s{T0}, 63, s{T0}")
        A(f"s_lshl_b32 s{T0}, s{T0}, 16")
        A(f"s_lshl_b32 s{T1}, s{T1}, 12")
        A(f"s_add_u32 s{T0}, s{T0}, s{T1}")
        A(f"v_sub_u32 v{VA}, 3, v{VA}")
        A(f"v_lshlrev_b32 v{VA}, 4, v{VA}")
        A(f"v_lshl_add_u32 v{VA}, v{VA+1}, 8, v{VA}")

        cp = []
        A = lambda t, tag=None: cp.append(I(t, tag))
        for dd in range(4):
            for tap in range(4):
                src = SH + 2 * dd + (tap >> 1)
                if tap & 1:
                    A(f"v_and_b32 v{C+tap*4+dd}, 0xffff0000, v{src}")
                else:
                    A(f"v_lshlrev_b32 v{C+tap*4+dd}, 16, v{src}")

        def unpack(dst, src):
            A(f"v_lshlrev_b32 v{dst}, 16, v{src}")
            A(f"v_and_b32 v{dst+1}, 0xffff0000, v{src}")
            A(f"v_lshlrev_b32 v{dst+2}, 16, v{src+1}")
            A(f"v_and_b32 v{dst+3}, 0xffff0000, v{src+1}")
        for r in range(11):
            ku = KU + 4 * (r & 3)
            unpack(ku, K + 2 * r)
            for j in range(4):
                e = r - j
                if e < 0 or e > 7:
                    continue
                c = C + (3 - j) * 4
                a = AC + 4 * e
                for h in range(2):
                    if j == 0:
                        A(f"v_pk_mul_f32 v[{a+2*h}:{a+2*h+1}], v[{ku+2*h}:{ku+2*h+1}], v[{c+2*h}:{c+2*h+1}]")
                    else:
                        A(f"v_pk_fma_f32 v[{a+2*h}:{a+2*h+1}], v[{ku+2*h}:{ku+2*h+1}], v[{c+2*h}:{c+2*h+1}], v[{a+2*h}:{a+2*h+1}]")
            e = r - 3
            if e >= 0:
                unpack(VU, V + 2 * e)
                a = AC + 4 * e
                for h in range(2):
                    A(f"v_pk_mul_f32 v[{a+2*h}:{a+2*h+1}], v[{a+2*h}:{a+2*h+1}], v[{VU+2*h}:{VU+2*h+1}]")
        O = K
        assert O % 2 == 0
        for dd in range(4):
            for m in range(4):
                A(f"v_cvt_pk_bf16_f32 v{O+dd*4+m}, v{AC+4*(7-2*m)+dd}, v{AC+4*(6-2*m)+dd}")
            A(f"buffer_store_dwordx4 v[{O+dd*4}:{O+dd*4+3}], v{VA}, s[{SU}:{SU+3}], s{T0} offen offset:{dd*64} {self.store_mod}", tag="prest")
        Z = C
        for rr in range(2):
            A(f"v_mov_b32 v{Z+rr}, 0")
        for n in range(8):
            for rr in range(2):
                A(f"v_dot2c_f32_bf16 v{Z+rr}, v{Q+8*rr+n}, v{GW+n}")
        A("s_nop 2")
        for sh in ("row_shr:1", "row_shr:2", "row_shr:4", "row_shr:8", "row_bcast:15 row_mask:0xa", "row_bcast:31 row_mask:0xc"):
            for rr in range(2):
                bc = " bound_ctrl:0" if sh.startswith("row_shr") else ""
                A(f"v_add_f32_dpp v{Z+rr}, v{Z+rr}, v{Z+rr} {sh}{bc}")
        A(f"v_cvt_pk_bf16_f32 v{Z+2}, v{Z}, v{Z+1}")
        A(f"v_lshlrev_b32 v{Z}, 16, v{Z+2}")
        A(f"v_and_b32 v{Z+1}, 0xffff0000, v{Z+2}")
        for rr in range(2):
            A(f"v_mul_f32 v{Z+rr}, 0xbfb8aa3b, v{Z+rr}")
        for rr in range(2):
            A(f"v_exp_f32 v{Z+rr}, v{Z+rr}")
        for rr in range(2):
            A(f"v_add_f32 v{Z+rr}, 1.0, v{Z+rr}")
        for rr in range(2):
            A(f"v_rcp_f32 v{Z+rr}, v{Z+rr}")
        A(f"v_cvt_pk_bf16_f32 v{Z+2}, v{Z}, v{Z+1}")
        A(f"v_lshlrev_b32 v{Z+4}, 16, v{Z+2}")
        A(f"v_and_b32 v{Z+6}, 0xffff0000, v{Z+2}")
        A(f"v_sub_f32 v{Z}, 1.0, v{Z+4}")
        A(f"v_sub_f32 v{Z+1}, 1.0, v{Z+6}")
        A(f"v_cvt_pk_bf16_f32 v{Z+2}, v{Z}, v{Z+1}")
        A(f"v_lshlrev_b32 v{Z+5}, 16, v{Z+2}")
        A(f"v_and_b32 v{Z+7}, 0xffff0000, v{Z+2}")
        A(f"s_lshr_b32 s{T2}, s{T2}, 8")
        A(f"v_add_u32 v{VA+1}, 1, v{vlane}")
        A(f"v_and_b32 v{VA+1}, 63, v{VA+1}")
        A(f"v_min_u32 v{VA+1}, 1, v{VA+1}")
        A(f"v_lshlrev_b32 v{VA+1}, 31, v{VA+1}")
        A(f"buffer_store_dwordx4 v[{Z+4}:{Z+7}], v{VA+1}, s[{SGO}:{SGO+3}], s{T2} offen {self.store_mod}", tag="prest")
        return ld, cp

    def build(self):
        o = []
        A = lambda t: o.append(I(t))
        A("s_cmp_ge_u32 s2, 256")
        A(f"s_cbranch_scc1 L_{self.name}_done")
        A(f"s_load_dwordx8 s[4:11], s[0:1], 0")
        A(f"s_load_dwordx2 s[12:13], s[0:1], {KARG['gw']}")
        A(f"s_load_dwordx2 s[14:15], s[0:1], {KARG['ws']}")
        A("v_lshrrev_b32 v1, 6, v0")
        A("v_and_b32 v2, 63, v0")
        A("v_readfirstlane_b32 s20, v1")
        A("s_waitcnt lgkmcnt(0)")
        ld, cp = self.body(20, 2, dict(q=4, k=6, v=8, shift=10, gw=12, ws=14))
        o += ld + cp
        A("s_waitcnt vmcnt(0)")
        o, st = insert_waits(o)
        o, _ = pad_hazards(o)
        return "\n".join(kernel_header(self.name)) + "\n" + text_of(o) + f"\nL_{self.name}_done:\n    s_endpgm\n"
```

```python
import sys
sys.path.insert(0, "work")
from gemm1 import *
from pre import *
from conv import *
from gemm2 import *
def make(prof=False, P=0, NB=8, S=3):
    p = Pre(); c = Conv(prof=False); g1 = G1(S=S, prof=False); g2 = G2(prof=prof, P=P, NB=NB)
    ks = [(p.name, p.build(), (256,102,256)), (g1.name, g1.build(), (512,102,256)), (c.name, c.build(), (256,102,128)), (g2.name, g2.build(), (512,102,256))]
    ls = [(p.name,256,256,0), (g1.name,256,256,g1.lds), (c.name,256,256,c.lds), (g2.name,256,256,g2.lds)]
    return wrap(ks, ls)
if __name__ == "__main__":
    hdr = "".join(l for l in open("gated_mix__ssm_conv_h3__swiglu_ffn__prompt.s.ref").readlines()[:15])
    open("gated_mix__ssm_conv_h3__swiglu_ffn__prompt.s", "w").write(hdr + make())
```

```python
import re

REG_RE = re.compile(r"(?<![\w.])([vas])(?:(\d+)|\[(\d+):(\d+)\])(?![\w])")

TRANS = ("v_exp_f32", "v_log_f32", "v_rcp_f32", "v_rsq_f32", "v_sqrt_f32", "v_sin_f32", "v_cos_f32")


def regs_of(op):
    out = []
    for m in REG_RE.finditer(op):
        f = m.group(1)
        if m.group(2) is not None:
            out.append((f, int(m.group(2))))
        else:
            out.extend((f, i) for i in range(int(m.group(3)), int(m.group(4)) + 1))
    for sp in ("vcc", "exec", "m0"):
        if re.search(r"(?<![\w])" + sp + r"(?![\w])", op):
            out.append((sp, 0))
    return out


def split_ops(s):
    ops, depth, cur = [], 0, ""
    for ch in s:
        if ch == "[" or ch == "(":
            depth += 1
        elif ch == "]" or ch == ")":
            depth -= 1
        if ch == "," and depth == 0:
            ops.append(cur.strip()); cur = ""
        else:
            cur += ch
    if cur.strip():
        ops.append(cur.strip())
    return ops


class Ins:
    __slots__ = ("text", "op", "kind", "rd", "wr", "tag", "srcc", "sab", "pseudo", "arg")

    def __init__(self, text, tag=None):
        self.text = text
        self.tag = tag
        self.pseudo = None
        self.arg = None
        self.srcc = []
        self.sab = []
        t = text.split(";")[0].strip()
        if not t or t.endswith(":") or t.startswith("."):
            self.op = ""; self.kind = "label" if t.endswith(":") else "none"; self.rd = []; self.wr = []
            return
        parts = t.split(None, 1)
        op = parts[0]
        op = re.sub(r"_(e32|e64|sdwa|dpp)$", "", op)
        self.op = op
        rest = parts[1] if len(parts) > 1 else ""
        ops = split_ops(rest)
        rd, wr = [], []
        k = None
        if op.startswith("v_mfma"):
            k = "mfma"
            wr = regs_of(ops[0]); self.sab = regs_of(ops[1]) + regs_of(ops[2]); self.srcc = regs_of(ops[3])
            rd = self.sab + self.srcc
        elif op.startswith("ds_read") or op.startswith("ds_bpermute") or op.startswith("ds_permute") or op.startswith("ds_swizzle"):
            k = "ds"; wr = regs_of(ops[0]); rd = [r for o in ops[1:] for r in regs_of(o)]
        elif op.startswith("ds_"):
            k = "ds"; rd = [r for o in ops for r in regs_of(o)]
        elif op.startswith("buffer_load") or op.startswith("global_load"):
            if re.search(r"\blds\b", rest) or op.startswith("global_load_lds"):
                k = "dma"; rd = [r for o in ops for r in regs_of(o)] + [("m0", 0)]
            else:
                k = "vload"; wr = regs_of(ops[0]); rd = [r for o in ops[1:] for r in regs_of(o)]
        elif op.startswith("buffer_store") or op.startswith("global_store"):
            k = "vstore"; rd = [r for o in ops for r in regs_of(o)]
        elif op.startswith("buffer_atomic") or op.startswith("global_atomic"):
            k = "vstore"; rd = [r for o in ops for r in regs_of(o)]
            if re.search(r"\bsc0\b", rest):
                k = "vload"; wr = regs_of(ops[0])
        elif op in ("buffer_inv", "buffer_wbl2"):
            k = "vstore"
        elif op.startswith("s_load") or op.startswith("s_buffer_load") or op in ("s_memtime", "s_memrealtime"):
            k = "smem"; wr = regs_of(ops[0]); rd = [r for o in ops[1:] for r in regs_of(o)]
        elif op == "s_waitcnt":
            k = "wait"
        elif op == "s_barrier":
            k = "barrier"
        elif op == "s_nop":
            k = "nop"
        elif op.startswith("s_cbranch") or op in ("s_branch", "s_endpgm", "s_setpc_b64"):
            k = "branch"; rd = [r for o in ops for r in regs_of(o)]
        elif op.startswith("s_cmp") or op.startswith("s_bitcmp"):
            k = "salu"; rd = [r for o in ops for r in regs_of(o)]
        elif op in ("s_setprio", "s_sleep", "s_sendmsg"):
            k = "salu"
        elif op.startswith("s_"):
            k = "salu"; wr = regs_of(ops[0]); rd = [r for o in ops[1:] for r in regs_of(o)]
            if "saveexec" in op:
                wr = wr + [("exec", 0)]; rd = rd + [("exec", 0)]
            if op in ("s_addk_i32", "s_mulk_i32"):
                rd = rd + wr
        elif op.startswith("v_"):
            k = "valu"
            if op.startswith("v_cmpx"):
                wr = regs_of(ops[0]) + [("exec", 0)]; rd = [r for o in ops[1:] for r in regs_of(o)]
            elif op in ("v_swap_b32",) or op.startswith("v_permlane16_swap") or op.startswith("v_permlane32_swap"):
                wr = regs_of(ops[0]) + regs_of(ops[1]); rd = list(wr)
            elif re.match(r"v_(add|sub|subrev|addc|subb|subbrev)_co_u32", op) or op.startswith("v_div_scale") or op.startswith("v_mad_u64"):
                wr = regs_of(ops[0]) + regs_of(ops[1]); rd = [r for o in ops[2:] for r in regs_of(o)]
            else:
                wr = regs_of(ops[0]); rd = [r for o in ops[1:] for r in regs_of(o)]
                if op.startswith("v_fmac") or op.startswith("v_pk_fmac") or op.startswith("v_dot2c") or op.startswith("v_mac") or op == "v_writelane_b32":
                    rd = rd + wr
                if op == "v_cndmask_b32" and len(ops) == 3:
                    rd = rd + [("vcc", 0)]
                if "UNUSED_PRESERVE" in rest or "row_" in rest or "quad_perm" in rest:
                    rd = rd + wr
        else:
            raise ValueError("cannot classify: " + text)
        self.kind = k
        self.rd = rd
        self.wr = wr

    def states(self):
        if self.kind in ("label", "none"):
            return 0
        if self.kind == "nop":
            return int(self.text.split()[1], 0) + 1
        return 1


def I(text, tag=None):
    return Ins(text, tag)


def WAITTAG(tag):
    i = Ins("s_waitcnt vmcnt(0)")
    i.pseudo = "waittag"; i.arg = tag
    return i


def WAITDS(tag=None):
    i = Ins("s_waitcnt lgkmcnt(0)")
    i.pseudo = "waitds"; i.arg = tag
    return i


def WAITREG(v, f="v"):
    i = Ins("s_waitcnt vmcnt(0)")
    i.pseudo = "waitreg"; i.arg = (f, v)
    return i


def merge_waits(a, b):
    def split(seq):
        out = []; cur = (None, None)
        for x in seq:
            if x.kind == "wait":
                v, l = parse_wait(x.text)
                cur = (v if cur[0] is None else (cur[0] if v is None else min(v, cur[0])),
                       l if cur[1] is None else (cur[1] if l is None else min(l, cur[1])))
            else:
                out.append((cur, x)); cur = (None, None)
        return out
    A, B = split(a), split(b)
    assert [x.text for _, x in A] == [x.text for _, x in B]
    out = []
    mn = lambda p, q: q if p is None else (p if q is None else min(p, q))
    for (wa, x), (wb, _) in zip(A, B):
        v, l = mn(wa[0], wb[0]), mn(wa[1], wb[1])
        if v is not None or l is not None:
            out.append(Ins("s_waitcnt" + (f" vmcnt({v})" if v is not None else "") + (f" lgkmcnt({l})" if l is not None else "")))
        out.append(x)
    return out


class State:
    def __init__(self):
        self.vm = []
        self.ds = []
        self.smem = []

    def copy(self):
        s = State(); s.vm = list(self.vm); s.ds = list(self.ds); s.smem = list(self.smem)
        return s


def parse_wait(text):
    vm = re.search(r"vmcnt\((\d+)\)", text)
    lg = re.search(r"lgkmcnt\((\d+)\)", text)
    return (int(vm.group(1)) if vm else None, int(lg.group(1)) if lg else None)


def insert_waits(seq, st=None):
    st = st or State()
    out = []

    def emit_wait(vm, lg):
        if vm is not None and vm >= len(st.vm):
            vm = None
        if lg is not None and not st.smem and lg >= len(st.ds):
            lg = None
        if vm is None and lg is None:
            return
        if vm is not None:
            vm = min(vm, 63)
        if lg is not None:
            lg = min(lg, 15)
            if st.smem:
                lg = 0
        if out and out[-1].kind == "wait" and out[-1].pseudo == "auto":
            pv, pl = parse_wait(out[-1].text)
            out.pop()
            if pv is not None:
                vm = pv if vm is None else min(vm, pv)
            if pl is not None:
                lg = pl if lg is None else min(lg, pl)
        t = "s_waitcnt" + (f" vmcnt({vm})" if vm is not None else "") + (f" lgkmcnt({lg})" if lg is not None else "")
        w = Ins(t); w.pseudo = "auto"
        out.append(w)
        apply_wait(vm, lg)

    def apply_wait(vm, lg):
        if vm is not None and len(st.vm) > vm:
            st.vm = st.vm[len(st.vm) - vm:] if vm > 0 else []
        if lg is not None:
            if lg == 0:
                st.ds = []; st.smem = []
            elif len(st.ds) > lg:
                st.ds = st.ds[len(st.ds) - lg:]

    for ins in seq:
        if ins.pseudo == "waittag":
            idx = [n for n, (w, tg) in enumerate(st.vm) if (tg in ins.arg if isinstance(ins.arg, (list, set, frozenset)) else tg == ins.arg)]
            if idx:
                emit_wait(len(st.vm) - 1 - max(idx), None)
            continue
        if ins.pseudo == "waitreg":
            idx = [n for n, (w, tg) in enumerate(st.vm) if ins.arg in w]
            if idx:
                emit_wait(len(st.vm) - 1 - max(idx), None)
            continue
        if ins.pseudo == "waitds":
            if ins.arg is None:
                if st.ds or st.smem:
                    emit_wait(None, 0)
            else:
                idx = [n for n, (w, tg) in enumerate(st.ds) if tg == ins.arg]
                if idx:
                    emit_wait(None, len(st.ds) - 1 - max(idx))
            continue
        if ins.kind == "wait":
            vm, lg = parse_wait(ins.text)
            apply_wait(vm, lg)
            out.append(ins)
            continue
        touched = set(ins.rd) | set(ins.wr)
        vm = lg = None
        if touched:
            for n, (w, tg) in enumerate(st.vm):
                if w & touched:
                    vm = len(st.vm) - 1 - n
            for n, (w, tg) in enumerate(st.ds):
                if w & touched:
                    lg = len(st.ds) - 1 - n
            for w in st.smem:
                if w & touched:
                    lg = 0
        if vm is not None or lg is not None:
            emit_wait(vm, lg)
        if ins.kind in ("vload", "vstore", "dma") and len(st.vm) >= 63:
            emit_wait(62, None)
        if ins.kind == "ds" and len(st.ds) >= 15:
            emit_wait(None, 14)
        out.append(ins)
        if ins.pseudo == "nocount":
            continue
        if ins.kind in ("vload", "vstore", "dma"):
            st.vm.append((set(ins.wr), ins.tag))
        elif ins.kind == "ds":
            st.ds.append((set(ins.wr), ins.tag))
        elif ins.kind == "smem":
            st.smem.append(set(ins.wr))
    return out, st


def mfma_passes(op):
    if "32x32x16" in op or "32x32x8" in op:
        return 8
    if "16x16x32" in op or "16x16x16" in op:
        return 4
    raise ValueError(op)


def need_states(p, c):
    n = 0
    pw, cr, cw = set(p.wr), set(c.rd), set(c.wr)
    isv = lambda r: r[0] in ("v", "a")
    if p.kind == "mfma":
        ps = mfma_passes(p.op)
        d = pw
        if c.kind == "mfma":
            if d & set(c.sab):
                n = max(n, {4: 8, 8: 12}[ps])
            if d & set(c.srcc):
                if not (set(c.srcc) == d and mfma_passes(c.op) == ps):
                    n = max(n, {4: 6, 8: 10}[ps])
            elif d & cw:
                n = max(n, {4: 6, 8: 10}[ps])
        elif c.kind in ("valu", "ds", "vload", "vstore", "dma"):
            if d & (cr | cw):
                n = max(n, {4: 8, 8: 12}[ps])
        if c.kind == "valu" and set(p.srcc) & cw:
            n = max(n, {4: 3, 8: 7}[ps])
    if p.kind == "valu":
        vw = {r for r in pw if isv(r)}
        sw = {r for r in pw if r[0] in ("s", "vcc")}
        if c.kind == "mfma" and vw & cr:
            n = max(n, 2)
        if c.kind == "mfma" and ("exec", 0) in pw:
            n = max(n, 4)
        if c.kind in ("vload", "vstore", "dma") and sw & cr:
            n = max(n, 5)
        if c.kind == "valu":
            if sw & cr:
                n = max(n, 4 if c.op in ("v_readlane_b32", "v_writelane_b32") else 2)
            if c.op in ("v_readlane_b32", "v_readfirstlane_b32") and vw & cr:
                n = max(n, 1)
            if c.op.startswith("v_permlane") and vw & cr:
                n = max(n, 2)
            if ("row_" in c.text or "quad_perm" in c.text or "wave_" in c.text) and vw & cr:
                n = max(n, 2)
            if p.op in TRANS and c.op not in TRANS and vw & cr:
                n = max(n, 1)
            if ("sdwa" in p.text or "dst_sel" in p.text or "op_sel" in p.text) and not p.op.startswith("v_pk_") and vw & (cr | cw):
                n = max(n, 1)
            if ("exec", 0) in pw and (c.op in ("v_readlane_b32", "v_readfirstlane_b32", "v_writelane_b32") or c.op.startswith("v_permlane")):
                n = max(n, 4)
            if ("exec", 0) in pw and ("row_" in c.text or "quad_perm" in c.text):
                n = max(n, 5)
        if c.kind == "salu" and sw & cr:
            n = max(n, 1)
    if p.kind == "salu" and ("m0", 0) in pw and c.kind == "dma":
        n = max(n, 1)
    if p.kind == "vstore" and re.search(r"x[34]\b", p.op):
        data = set(regs_of(split_ops(p.text.split(None, 1)[1])[0 if p.op.startswith("buffer") else 1]))
        if data & cw:
            n = max(n, 2 if c.kind == "valu" else 1)
    return n


def pad_hazards(seq, lookback=24, verbose=False, pre=None):
    hist = list(pre or [])
    out = []
    npad = 0
    for c in seq:
        if c.kind in ("label", "none"):
            out.append(c); hist.append(c); continue
        need = 0
        dist = 0
        for p in reversed(hist[-lookback * 2:]):
            if dist >= 20:
                break
            if p.kind not in ("label", "none", "wait", "nop", "barrier"):
                n = need_states(p, c)
                if n > dist:
                    need = max(need, n - dist)
            dist += p.states()
        if need > 0:
            npad += need
            while need > 0:
                k = min(need, 16)
                nop = Ins(f"s_nop {k - 1}")
                out.append(nop); hist.append(nop)
                need -= k
            if verbose:
                print("pad before:", c.text)
        out.append(c); hist.append(c)
    return out, npad


def text_of(seq):
    return "\n".join(("" if i.kind == "label" else "    ") + i.text for i in seq)


def interleave(mfmas, side):
    out = list(side.get(-1, []))
    for n, m in enumerate(mfmas):
        out.append(m)
        out.extend(side.get(n, []))
    return out


def kernel_header(name):
    return [f".globl {name}", ".p2align 8", f".type {name},@function", f"{name}:"]


def kernel_desc(name, vgpr=512, sgpr=102, accum=256):
    return "\n".join([
        f".amdhsa_kernel {name}",
        f"  .amdhsa_next_free_vgpr {vgpr}",
        f"  .amdhsa_next_free_sgpr {sgpr}",
        f"  .amdhsa_accum_offset {accum}",
        "  .amdhsa_group_segment_fixed_size 0",
        "  .amdhsa_kernarg_size 112",
        "  .amdhsa_user_sgpr_count 2",
        "  .amdhsa_user_sgpr_kernarg_segment_ptr 1",
        "  .amdhsa_system_sgpr_workgroup_id_x 1",
        "  .amdhsa_float_denorm_mode_32 3",
        "  .amdhsa_float_denorm_mode_16_64 3",
        ".end_amdhsa_kernel"])
```

```python
from asmlib import *

WS_H = 0
WS_H_SIZE = 16 * 32 * 28672
WS_PROF = 32 << 20
WS_SIZE = 268435456

KARG = dict(q=0, k=8, v=16, shift=24, ssmk=32, ssmd=40, bx=48, wg=56, wu=64, wd=72, gw=80, out=88, dbg=96, ws=104)


def srd(dst, src, size, off=0):
    o = []
    if off:
        o.append(I(f"s_add_u32 s{dst}, s{src}, {off}"))
        o.append(I(f"s_addc_u32 s{dst+1}, s{src+1}, 0"))
        o.append(I(f"s_and_b32 s{dst+1}, s{dst+1}, 0xffff"))
    else:
        o.append(I(f"s_mov_b32 s{dst}, s{src}"))
        o.append(I(f"s_and_b32 s{dst+1}, s{src+1}, 0xffff"))
    o.append(I(f"s_mov_b32 s{dst+2}, {size}"))
    o.append(I(f"s_mov_b32 s{dst+3}, 0x20000"))
    return o


def fix_m0(seq, cur=None):
    out = []
    for ins in seq:
        if ins.kind == "dma" and ins.arg is not None:
            if ins.arg != cur:
                cur = ins.arg
                sg, add, _ = cur
                w = I(f"s_mov_b32 m0, s{sg}") if add == 0 else I(f"s_add_u32 m0, s{sg}, {add}")
                if out and out[-1].kind in ("mfma", "ds", "valu") and not out[-1].pseudo:
                    out.insert(len(out) - 1, w)
                else:
                    out.append(w)
        elif ("m0", 0) in ins.wr:
            cur = None
        out.append(ins)
    return out, cur


def fold(steps, cnt_sgpr, label, period=2):
    txt = [text_of(s) for s in steps]
    n = len(steps)
    best = (0, 0)
    for st in range(0, n - period + 1):
        reps = 1
        while st + (reps + 1) * period <= n and all(txt[st + p] == txt[st + reps * period + p] for p in range(period)):
            reps += 1
        if reps > best[1]:
            best = (st, reps)
    st, reps = best
    out = []
    for s in steps[:st]:
        out += s
    if reps >= 2:
        out.append(I(f"s_mov_b32 s{cnt_sgpr}, {reps}"))
        out.append(I(f"{label}:"))
        body = []
        for p in range(period):
            body += steps[st + p]
        idx = max(i for i, x in enumerate(body) if x.kind == "mfma")
        body = body[:idx] + [I(f"s_sub_u32 s{cnt_sgpr}, s{cnt_sgpr}, 1"), I(f"s_cmp_lg_u32 s{cnt_sgpr}, 0")] + body[idx:]
        assert all(x.kind != "salu" or x.op.startswith("s_mov") or x.op in ("s_setprio",) for x in body[idx + 2:]), "scc clobbered"
        out += body
        out.append(I(f"s_cbranch_scc1 {label}"))
        rest = steps[st + reps * period:]
    else:
        rest = steps[st:]
    for s in rest:
        out += s
    return out, (st, reps)


class G1:
    def __init__(self, S=2, wpos=None, xpos=None, prof=False, store_mod="sc1", name="gemm1_kernel", pfw=(), pfx=(), codepf=False, pfmod="", fine=False, lean=False, lead=5, order=0, pfgap=42, startprof=False, noinit=False):
        self.S = S
        self.prof = prof
        self.store_mod = store_mod
        self.name = name
        self.XB = 0
        self.WB = 65536
        self.lds = 65536 + S * 28672
        self.wpos = wpos or [(0, 96 + 6), (0, 104 + 6), (1, 6), (1, 14), (1, 22), (1, 30), (1, 38)]
        self.xpos = xpos or [46, 54, 62, 70, 74, 78, 86, 94]
        self.pfw = pfw
        self.pfx = pfx
        self.codepf = codepf
        self.pfmod = pfmod
        self.fine = fine
        self.lean = lean
        self.lead = lead
        self.order = order
        self.pfgap = pfgap
        self.startprof = startprof
        self.noinit = noinit
        self.npf = 0

    def acc(self, i, jp):
        b = (jp * 4 + i) * 4
        return f"v[{b}:{b+3}]"

    def xf(self, buf, i, ks):
        b = buf * 32 + (i * 2 + ks) * 4
        return f"a[{b}:{b+3}]"

    def wf(self, slot, ks):
        b = 64 + slot * 8 + ks * 4
        return b

    VX = 224
    VW = 232
    VXR = 239
    VWR = 241
    VWL = 242
    VPW = 243
    VPX = 244
    VD = 245
    VT = 246

    SX, SW, SH = 8, 12, 16
    S_WAVE, S_TT, S_FT = 20, 21, 22
    S_XK, S_WK = 23, 24
    S_XD, S_WD = 25, 26
    S_WR = 27
    S_CNT = 28
    S_T0, S_T1, S_T2 = 29, 30, 31
    S_C = 32
    S_PROF = 36
    S_ST = 40

    def sst(self, n):
        if not self.startprof:
            return []
        return [I(f"s_memtime s[{self.S_ST+2*n}:{self.S_ST+2*n+1}]"), I("s_waitcnt lgkmcnt(0)")]

    def stamp(self, n):
        if not self.prof or (self.startprof and n > 0):
            return []
        return [I(f"s_memtime s[{self.S_ST+2*n}:{self.S_ST+2*n+1}]")]

    def x_dma(self, step, mm):
        o = []
        o.append(I(f"buffer_load_dwordx4 v{self.VX+mm}, s[{self.SX}:{self.SX+3}], s{self.S_XK} offen offset:{(mm&3)*1024} lds", tag=("x", step)))
        o[-1].arg = (self.S_XD, (mm >> 2) * 4096, ("x", step))
        if mm == 7:
            o.append(I(f"s_add_u32 s{self.S_XK}, s{self.S_XK}, 128"))
            o.append(I(f"s_xor_b32 s{self.S_XD}, s{self.S_XD}, 8192"))
        return o

    def w_dma(self, step, mm):
        o = []
        o.append(I(f"buffer_load_dwordx4 v{self.VW+mm}, s[{self.SW}:{self.SW+3}], s{self.S_WK} offen offset:{(mm&3)*1024} lds", tag=("w", step)))
        o[-1].arg = (self.S_WD, (mm >> 2) * 4096, ("w", step))
        if mm == 6:
            o.append(I(f"s_add_u32 s{self.S_WK}, s{self.S_WK}, {64*7168}"))
            o += self.rot(self.S_WD, self.S_T2)
        return o

    def rot(self, s, base_s):
        if self.S == 2:
            return [I(f"s_xor_b32 s{s}, s{s}, s{base_s}")]
        return [I(f"s_add_u32 s{s}, s{s}, 28672"),
                I(f"s_cmp_ge_u32 s{s}, s{base_s}"),
                I(f"s_cselect_b32 s{self.S_T0}, {self.S*28672}, 0"),
                I(f"s_sub_u32 s{s}, s{s}, s{self.S_T0}")]

    def w_reads(self, jp, slot, step=None):
        o = []
        for ks in range(2):
            for hf in range(2):
                b = self.wf(slot, ks) + 2 * hf
                off = (jp & 1) * 14336 + ks * 7168 + hf * 1792 + (jp >> 1) * 32
                o.append(I(f"ds_read_b64_tr_b16 a[{b}:{b+1}], v{self.VWR} offset:{off}", tag=("wr", step, jp)))
        return o

    def x_reads(self, step):
        o = []
        buf = step & 1
        for i in range(4):
            for ks in range(2):
                o.append(I(f"ds_read_b128 {self.xf(buf, i, ks)}, v{self.VXR+ks} offset:{(step&1)*8192 + i*2048}", tag=("xr", step)))
        return o

    def w_adv(self):
        if self.S == 2:
            o = [I(f"s_xor_b32 s{self.S_WR}, s{self.S_WR}, s{self.S_T1}")]
        else:
            o = [I(f"s_add_u32 s{self.S_WR}, s{self.S_WR}, 28672"),
                 I(f"s_cmp_ge_u32 s{self.S_WR}, {self.WB + self.S*28672}"),
                 I(f"s_cselect_b32 s{self.S_WR}, {self.WB}, s{self.S_WR}")]
        o.append(I(f"v_add_u32 v{self.VWR}, s{self.S_WR}, v{self.VWL}"))
        return o

    def setup(self):
        o = []
        A = lambda t, tag=None: o.append(I(t, tag))
        A("s_cmp_ge_u32 s2, 256")
        A(f"s_cbranch_scc1 L_{self.name}_done")
        o += self.stamp(0)
        if self.prof:
            A(f"s_memrealtime s[{self.S_ST+2*14}:{self.S_ST+2*14+1}]")
        A(f"s_load_dwordx2 s[4:5], s[0:1], {KARG['q']}")
        A(f"s_load_dwordx4 s[72:75], s[0:1], {KARG['wg']}")
        A(f"s_load_dwordx2 s[6:7], s[0:1], {KARG['ws']}")
        if self.lean:
            A(f"s_load_dwordx2 s[82:83], s[0:1], {KARG['wd']}")
        if self.codepf and not self.lean:
            o += self.code_pf(self.codepf)
        A("v_lshrrev_b32 v1, 6, v0")
        A("v_and_b32 v2, 63, v0")
        A(f"v_readfirstlane_b32 s{self.S_WAVE}, v1")
        if self.lean:
            o += self.lean_pf_setup()
            A("s_waitcnt lgkmcnt(0)")
            o += self.sst(1)
            o += self.lean_pf_srd()
            for n in range(4, self.lead):
                o += self.lean_pf(2 + n)
            if self.codepf:
                o += self.code_pf(self.codepf)
            o += self.sst(2)
        A(f"s_and_b32 s{self.S_T0}, s2, 7")
        A(f"s_lshr_b32 s{self.S_T1}, s2, 3")
        A(f"s_and_b32 s{self.S_TT}, s{self.S_T1}, 3")
        A(f"s_and_b32 s{self.S_T2}, s{self.S_T0}, 1")
        A(f"s_lshl_b32 s{self.S_T2}, s{self.S_T2}, 2")
        A(f"s_add_u32 s{self.S_TT}, s{self.S_TT}, s{self.S_T2}")
        A(f"s_lshr_b32 s{self.S_FT}, s{self.S_T1}, 2")
        A(f"s_lshr_b32 s{self.S_T2}, s{self.S_T0}, 1")
        A(f"s_lshl_b32 s{self.S_T2}, s{self.S_T2}, 3")
        A(f"s_add_u32 s{self.S_FT}, s{self.S_FT}, s{self.S_T2}")
        A(f"s_lshl_b32 s{self.S_T0}, s{self.S_TT}, 8")
        A(f"s_lshl_b32 s{self.S_T1}, s{self.S_WAVE}, 6")
        A(f"s_add_u32 s{self.S_T0}, s{self.S_T0}, s{self.S_T1}")
        A(f"s_lshl_b32 s{self.S_T0}, s{self.S_T0}, 11")
        A("v_lshrrev_b32 v3, 3, v2")
        A("v_lshlrev_b32 v3, 11, v3")
        A(f"v_add_u32 v3, s{self.S_T0}, v3")
        A("v_and_b32 v4, 7, v2")
        A("v_lshrrev_b32 v5, 4, v2")
        A("v_xor_b32 v4, v4, v5")
        A("v_xor_b32 v6, 4, v4")
        A("v_lshl_add_u32 v4, v4, 4, v3")
        A("v_lshl_add_u32 v6, v6, 4, v3")
        for mm in range(8):
            A(f"v_add_u32 v{self.VX+mm}, {mm*16384 - (mm&3)*1024}, v{4 if mm % 2 == 0 else 6}")
        A(f"s_and_b32 s{self.S_T0}, s{self.S_WAVE}, 1")
        A(f"s_mul_i32 s{self.S_T0}, s{self.S_T0}, 448")
        A(f"s_mul_i32 s{self.S_T1}, s{self.S_FT}, 224")
        A(f"s_movk_i32 s{self.S_T2}, 4682")
        A(f"s_movk_i32 s{self.S_C}, 7168")
        for mm in range(7):
            A(f"v_add_u32 v3, s{self.S_T0}, v2")
            if mm:
                A(f"v_add_u32 v3, {64*mm}, v3")
            A(f"v_mul_u32_u24 v4, s{self.S_T2}, v3")
            A("v_lshrrev_b32 v4, 16, v4")
            A("v_mul_u32_u24 v5, 14, v4")
            A("v_sub_u32 v5, v3, v5")
            A("v_and_b32 v6, 4, v4")
            A("v_and_b32 v7, 8, v4")
            A("v_and_b32 v4, 0x33, v4")
            A("v_lshl_add_u32 v4, v6, 1, v4")
            A("v_lshrrev_b32 v7, 1, v7")
            A("v_add_u32 v4, v4, v7")
            A(f"v_mul_u32_u24 v4, s{self.S_C}, v4")
            A("v_lshl_add_u32 v4, v5, 4, v4")
            A(f"v_add_u32 v4, s{self.S_T1}, v4")
            A(f"v_subrev_u32 v{self.VW+mm}, {(mm&3)*1024}, v4")
        A("v_and_b32 v3, 15, v2")
        A("v_lshrrev_b32 v4, 4, v2")
        A("v_lshrrev_b32 v5, 1, v3")
        A("v_xor_b32 v4, v4, v5")
        A("v_lshlrev_b32 v4, 4, v4")
        A("v_lshl_add_u32 v4, v3, 7, v4")
        A(f"s_lshl_b32 s{self.S_XD}, s{self.S_WAVE}, 14")
        if self.XB:
            A(f"s_add_u32 s{self.S_XD}, s{self.S_XD}, {self.XB}")
        A(f"v_add_u32 v{self.VXR}, s{self.S_XD}, v4")
        A(f"v_xor_b32 v{self.VXR+1}, 64, v{self.VXR}")
        A("v_lshrrev_b32 v3, 5, v2")
        A("v_lshlrev_b32 v3, 4, v3")
        A("v_bfe_u32 v4, v2, 4, 1")
        A("v_lshl_add_u32 v3, v4, 2, v3")
        A("v_bfe_u32 v4, v2, 2, 2")
        A("v_add_u32 v3, v3, v4")
        A("v_mul_u32_u24 v3, 224, v3")
        A("v_and_b32 v4, 3, v2")
        A(f"v_lshl_add_u32 v{self.VWL}, v4, 3, v3")
        A(f"s_mov_b32 s{self.S_WR}, {self.WB}")
        A(f"v_add_u32 v{self.VWR}, s{self.S_WR}, v{self.VWL}")
        A(f"s_mul_i32 s{self.S_WD}, s{self.S_WAVE}, 7168")
        A(f"s_add_u32 s{self.S_WD}, s{self.S_WD}, {self.WB}")
        if self.S == 2:
            A(f"s_add_u32 s{self.S_T2}, s{self.S_WD}, 28672")
            A(f"s_xor_b32 s{self.S_T2}, s{self.S_T2}, s{self.S_WD}")
            A(f"s_mov_b32 s{self.S_T1}, {self.WB ^ (self.WB + 28672)}")
        else:
            A(f"s_add_u32 s{self.S_T2}, s{self.S_WD}, {self.S*28672}")
        A(f"s_mov_b32 s{self.S_XK}, 0")
        A(f"s_mov_b32 s{self.S_WK}, 0")
        A("s_waitcnt lgkmcnt(0)")
        o += srd(self.SX, 4, 2048 * 2048)
        A(f"s_cmp_ge_u32 s{self.S_WAVE}, 2")
        A("s_cselect_b32 s72, s74, s72")
        A("s_cselect_b32 s73, s75, s73")
        o += srd(self.SW, 72, 1024 * 7168)
        o += srd(self.SH, 6, WS_H_SIZE, WS_H)
        if self.prof:
            o += srd(self.S_PROF, 6, 1 << 20, WS_PROF)
        return o

    def pf_setup(self):
        o = []
        A = lambda t, tag=None: o.append(I(t, tag))
        T0, T1, T2 = 76, 77, 78
        A("v_mul_u32_u24 v3, 4682, v2")
        A("v_lshrrev_b32 v3, 16, v3")
        A("v_mul_u32_u24 v4, 14, v3")
        A("v_sub_u32 v4, v2, v4")
        A(f"s_mov_b32 s{T0}, {64*7168}")
        A(f"v_mul_lo_u32 v5, v3, s{T0}")
        A("v_lshl_add_u32 v5, v4, 7, v5")
        A(f"s_and_b32 s{T0}, s2, 1")
        A(f"s_lshl_b32 s{T0}, s{T0}, 5")
        A(f"s_lshr_b32 s{T1}, s2, 3")
        A(f"s_add_u32 s{T0}, s{T0}, s{T1}")
        A(f"s_mul_i32 s{T0}, s{T0}, 7168")
        A(f"s_bfe_u32 s{T2}, s2, 0x20001")
        A(f"s_mul_i32 s79, s{T2}, 1792")
        A(f"s_add_u32 s{T0}, s{T0}, s79")
        A(f"v_add_u32 v5, s{T0}, v5")
        A("v_lshrrev_b32 v3, 2, v3")
        A(f"v_lshl_add_u32 v{self.VPW}, v3, 31, v5")
        A(f"s_and_b32 s{T0}, s2, 1")
        A(f"s_lshl_b32 s{T0}, s{T0}, 10")
        A(f"s_lshl_b32 s{T2}, s{T2}, 8")
        A(f"s_add_u32 s{T0}, s{T0}, s{T2}")
        A(f"s_lshl_b32 s{T1}, s{T1}, 3")
        A(f"s_add_u32 s{T0}, s{T0}, s{T1}")
        A(f"s_lshl_b32 s{T0}, s{T0}, 11")
        A("v_and_b32 v3, 7, v2")
        A("v_lshlrev_b32 v3, 11, v3")
        A("v_bfe_u32 v4, v2, 3, 2")
        A("v_lshl_add_u32 v3, v4, 7, v3")
        A(f"v_add_u32 v3, s{T0}, v3")
        A("v_lshrrev_b32 v4, 5, v2")
        A(f"v_lshl_add_u32 v{self.VPX}, v4, 31, v3")
        return o

    SP = 84
    S_PK, S_PSTR = 88, 89

    def lean_pf_setup(self):
        o = []
        A = lambda t, tag=None: o.append(I(t, tag))
        T0, T1, T2, T3 = 76, 77, 78, 79
        A(f"s_lshr_b32 s{T1}, s2, 3")
        A(f"s_bfe_u32 s{T2}, s2, 0x20001")
        A(f"s_and_b32 s{T0}, s2, 1")
        A(f"s_bitcmp1_b32 s{self.S_WAVE}, 0")
        A(f"s_cbranch_scc1 L_{self.name}_pfodd")
        A("v_mul_u32_u24 v3, 4682, v2")
        A("v_lshrrev_b32 v3, 16, v3")
        A("v_mul_u32_u24 v4, 14, v3")
        A("v_sub_u32 v4, v2, v4")
        A(f"s_lshl_b32 s{T0}, s{T0}, 5")
        A(f"s_add_u32 s{T0}, s{T0}, s{T1}")
        A(f"s_mul_i32 s{T0}, s{T0}, 7168")
        A(f"s_mul_i32 s{T3}, s{T2}, 1792")
        A(f"s_add_u32 s{self.S_PK}, s{T0}, s{T3}")
        A(f"s_mov_b32 s{self.S_PSTR}, {64*7168}")
        A(f"s_mov_b32 s90, {4*64*7168}")
        A("v_lshlrev_b32 v4, 7, v4")
        A("v_lshrrev_b32 v5, 2, v3")
        A(f"s_branch L_{self.name}_pfjoin")
        A(f"L_{self.name}_pfodd:")
        A(f"s_bitcmp1_b32 s{self.S_WAVE}, 1")
        A(f"s_cbranch_scc1 L_{self.name}_pfwd")
        A(f"s_lshl_b32 s{T0}, s{T0}, 10")
        A(f"s_lshl_b32 s{T2}, s{T2}, 8")
        A(f"s_add_u32 s{T0}, s{T0}, s{T2}")
        A(f"s_lshl_b32 s{T1}, s{T1}, 3")
        A(f"s_add_u32 s{T0}, s{T0}, s{T1}")
        A(f"s_lshl_b32 s{self.S_PK}, s{T0}, 11")
        A(f"s_mov_b32 s{self.S_PSTR}, 128")
        A(f"s_mov_b32 s90, 512")
        A("v_lshrrev_b32 v3, 3, v2")
        A("v_and_b32 v4, 7, v2")
        A("v_lshlrev_b32 v4, 11, v4")
        A("v_lshrrev_b32 v5, 2, v3")
        A(f"s_branch L_{self.name}_pfjoin")
        A(f"L_{self.name}_pfwd:")
        A(f"s_and_b32 s{T0}, s2, 3")
        A(f"s_lshl_b32 s{T0}, s{T0}, 5")
        A(f"s_add_u32 s{T0}, s{T0}, s{T1}")
        A(f"s_mul_i32 s{T0}, s{T0}, {28*2048}")
        A(f"s_bfe_u32 s{T2}, s2, 0x10002")
        A(f"s_lshl_b32 s{T2}, s{T2}, 10")
        A(f"s_add_u32 s{self.S_PK}, s{T0}, s{T2}")
        A(f"s_mov_b32 s90, 0")
        A(f"s_mov_b32 s{self.S_PSTR}, 6144")
        A("v_lshrrev_b32 v3, 3, v2")
        A("v_and_b32 v4, 7, v2")
        A("v_lshlrev_b32 v4, 7, v4")
        A("v_lshl_add_u32 v4, v3, 11, v4")
        A("v_cmp_le_u32 vcc, 3, v3")
        A("v_cndmask_b32 v3, 0, 1, vcc")
        A("v_mov_b32 v5, 1")
        A(f"L_{self.name}_pfjoin:")
        A(f"v_mul_lo_u32 v6, v3, s{self.S_PSTR}")
        A("v_add_u32 v6, v6, v4")
        A(f"v_lshl_add_u32 v{self.VPX}, v5, 31, v6")
        A("v_min_u32 v3, 1, v3")
        A(f"v_lshl_add_u32 v{self.VPW}, v3, 31, v4")
        return o

    def lean_pf_srd(self):
        o = []
        A = lambda t, tag=None: o.append(I(t, tag))
        SP = self.SP
        A(f"s_mov_b32 s{SP}, s72"); A(f"s_mov_b32 s{SP+1}, s73"); A(f"s_mov_b32 s{SP+2}, {1024*7168}")
        A(f"s_cmp_eq_u32 s{self.S_WAVE}, 2")
        A(f"s_cselect_b32 s{SP}, s74, s{SP}"); A(f"s_cselect_b32 s{SP+1}, s75, s{SP+1}")
        A(f"s_cmp_eq_u32 s{self.S_WAVE}, 3")
        A(f"s_cselect_b32 s{SP}, s82, s{SP}"); A(f"s_cselect_b32 s{SP+1}, s83, s{SP+1}")
        A(f"s_cmp_eq_u32 s{self.S_WAVE}, 1")
        A(f"s_cselect_b32 s{SP}, s4, s{SP}"); A(f"s_cselect_b32 s{SP+1}, s5, s{SP+1}")
        A(f"s_cselect_b32 s{SP+2}, {2048*2048}, s{SP+2}")
        A(f"s_and_b32 s{SP+1}, s{SP+1}, 0xffff")
        A(f"s_mov_b32 s{SP+3}, 0x20000")
        if not self.noinit:
            A(f"buffer_load_dword a200, v{self.VPX}, s[{SP}:{SP+3}], s{self.S_PK} offen {self.pfmod}", tag="pf")
        A(f"s_add_u32 s{self.S_PK}, s{self.S_PK}, s90")
        return o

    def lean_pf(self, n):
        return [I(f"buffer_load_dword a{201 + (n % 8)}, v{self.VPW}, s[{self.SP}:{self.SP+3}], s{self.S_PK} offen {self.pfmod}", tag="pf"),
                I(f"s_add_u32 s{self.S_PK}, s{self.S_PK}, s{self.S_PSTR}")]

    def pf(self, when):
        o = []
        if self.lean:
            if when >= 0 and when + self.lead <= 15:
                return self.lean_pf(when & 1)
            return []
        for (wh, s0, s1) in self.pfw:
            if wh == when:
                o.append(I(f"s_bitcmp1_b32 s{self.S_WAVE}, 0"))
                o.append(I(f"s_mov_b32 s76, {s0*64*7168}"))
                o.append(I(f"s_cselect_b32 s76, {s1*64*7168}, s76"))
                o.append(I(f"buffer_load_dword a{200+self.npf}, v{self.VPW}, s[{self.SW}:{self.SW+3}], s76 offen {self.pfmod}", tag="pf"))
                self.npf += 1
        for (wh, sts) in self.pfx:
            if wh == when:
                o.append(I(f"s_mov_b32 s77, 0x40000000"))
                for w, s0 in enumerate(sts):
                    if s0 is not None:
                        o.append(I(f"s_cmp_eq_u32 s{self.S_WAVE}, {w}"))
                        o.append(I(f"s_cselect_b32 s77, {s0*128}, s77"))
                o.append(I(f"buffer_load_dword a{200+self.npf}, v{self.VPX}, s[{self.SX}:{self.SX+3}], s77 offen {self.pfmod}", tag="pf"))
                self.npf += 1
        return o

    def code_pf(self, nbytes):
        o = []
        A = lambda t, tag=None: o.append(I(t, tag))
        A("s_getpc_b64 s[80:81]")
        A(f"L_{self.name}_pc:")
        A("v_lshlrev_b32 v3, 7, v0")
        for n in range((nbytes + 32767) // 32768):
            A(f"v_min_u32 v4, L_{self.name}_done-L_{self.name}_pc, v3")
            A(f"global_load_dword v{self.VD+2}, v4, s[80:81]", tag="pf")
            A("v_add_u32 v3, 32768, v3")
        return o

    def prologue(self):
        o = []
        o += self.sst(3)
        for mm in range(8):
            o += self.x_dma(0, mm)
        o += self.sst(4)
        for mm in range(7):
            o += self.w_dma(0, mm)
        o += self.sst(5)
        if self.order >= 1:
            for r in range(224):
                o.append(I(f"v_mov_b32 v{r}, 0"))
        if self.order >= 2:
            o += self.stamp(1)
            o += self.sst(6)
            o.append(WAITTAG([("x", 0), ("w", 0)]))
            o += self.sst(7)
            o.append(I("s_barrier"))
            o += self.sst(8)
            o += self.stamp(2)
            o += self.x_reads(0)
            o += self.w_reads(0, 0, 0)
            o += self.w_reads(1, 1, 0)
        for mm in range(8):
            o += self.x_dma(1, mm)
        for st in range(1, self.S):
            nw = 7 if st < self.S - 1 else sum(1 for (so, g) in self.wpos if so == 0)
            for mm in range(nw):
                o += self.w_dma(st, mm)
        if self.pfw or self.pfx:
            o += self.pf_setup() + self.pf(-1)
        if self.order < 1:
            for r in range(224):
                o.append(I(f"v_mov_b32 v{r}, 0"))
        if self.order < 2:
            o += self.stamp(1)
            o.append(WAITTAG([("x", 0), ("w", 0)]))
            o.append(I("s_barrier"))
            o += self.stamp(2)
            o += self.x_reads(0)
            o += self.w_reads(0, 0, 0)
            o += self.w_reads(1, 1, 0)
        o.append(WAITDS(("xr", 0)))
        for mm in range(8):
            o += self.x_dma(2, mm)
        o += self.sst(9)
        return o

    def step(self, i, nsteps=16):
        mf = []
        side = {}
        add = lambda g, l: side.setdefault(g, []).extend(l)
        for jp in range(14):
            slot = (i * 14 + jp) % 4
            for ii in range(4):
                for ks in range(2):
                    b = self.wf(slot, ks)
                    mf.append(I(f"v_mfma_f32_16x16x32_bf16 {self.acc(ii, jp)}, a[{b}:{b+3}], {self.xf(i & 1, ii, ks)}, {self.acc(ii, jp)}"))
        last = (i == nsteps - 1)
        for jp in range(14):
            if jp <= 9:
                for n, r in enumerate(self.w_reads(jp + 2, (i * 14 + jp + 2) % 4, i)):
                    add(8 * jp + n, [r])
            elif jp == 10:
                rs = self.w_reads(12, (i * 14 + 12) % 4, i) + self.w_reads(13, (i * 14 + 13) % 4, i)
                for n, r in enumerate(rs):
                    add(8 * jp + n, [r])
            elif jp >= 12 and not last:
                for n, r in enumerate(self.w_reads(jp - 12, (i * 14 + jp + 2) % 4, i + 1)):
                    add(8 * jp + 1 + n, [r])
        if not last:
            add(95, [WAITDS(), WAITTAG(("w", i + 1))] + self.w_adv())
            side[96] = [I("s_barrier")] + side.get(96, [])
            xr = self.x_reads(i + 1)
            add(8 + 3, [WAITTAG(("x", i + 1))])
            for n, r in enumerate(xr):
                add(8 * (1 + n // 2) + 4 + (n % 2), [r])
            if i + 3 < nsteps:
                add(self.xpos[0] - 1, [WAITDS(("xr", i + 1))])
                for mm in range(8):
                    add(self.xpos[mm], self.x_dma(i + 3, mm))
        for mm, (so, g) in enumerate(self.wpos):
            st = i + self.S - so
            if st < nsteps:
                add(g, self.w_dma(st, mm))
        add(self.pfgap, self.pf(i))
        if self.fine and i % 2 == 1:
            add(95, self.stamp(3 + i // 2))
        for jp in range(14):
            add(8 * jp - 1, [WAITDS(("wr", i, jp))])
        return interleave(mf, side)

    def epilogue(self):
        o = []
        A = lambda t, tag=None: o.append(I(t, tag))
        E = 8 if self.fine else 0
        o += self.stamp(3 + E)
        A(f"s_lshl_b32 s{self.S_T0}, s{self.S_TT}, 1")
        A(f"s_lshr_b32 s{self.S_T1}, s{self.S_WAVE}, 1")
        A(f"s_add_u32 s{self.S_T0}, s{self.S_T0}, s{self.S_T1}")
        A(f"s_lshl_b32 s{self.S_T0}, s{self.S_T0}, 5")
        A(f"s_add_u32 s{self.S_T0}, s{self.S_T0}, s{self.S_FT}")
        A(f"s_mul_i32 s{self.S_T0}, s{self.S_T0}, 28672")
        A(f"s_and_b32 s{self.S_T1}, s{self.S_WAVE}, 1")
        A(f"s_lshl_b32 s{self.S_T2}, s{self.S_T1}, 11")
        A(f"s_lshl_b32 s{self.S_T1}, s{self.S_T1}, 12")
        A(f"s_add_u32 s{self.S_T2}, s{self.S_T2}, s{self.S_T0}")
        A(f"s_add_u32 s{self.S_T2}, s{self.S_T2}, 24576")
        A(f"s_add_u32 s{self.S_T0}, s{self.S_T0}, s{self.S_T1}")
        A(f"s_mov_b32 s{self.S_C}, 0xbfb8aa3b")
        A(f"s_mov_b32 s{self.S_C+1}, 0xbfb8aa3b")
        VA = 224
        A(f"v_mbcnt_lo_u32_b32 v{VA}, -1, 0")
        A(f"v_mbcnt_hi_u32_b32 v{VA}, -1, v{VA}")
        A(f"v_lshlrev_b32 v{VA}, 4, v{VA}")
        T = 228

        def silu(i, j, tset, outreg):
            g = ((2 * j) * 4 + i) * 4
            u = ((2 * j + 1) * 4 + i) * 4
            t = T + 4 * tset
            c = self.S_C
            return [
                [I(f"v_pk_mul_f32 v[{t}:{t+1}], v[{g}:{g+1}], s[{c}:{c+1}]"), I(f"v_pk_mul_f32 v[{t+2}:{t+3}], v[{g+2}:{g+3}], s[{c}:{c+1}]")],
                [I(f"v_exp_f32 v{t+q}, v{t+q}") for q in range(4)],
                [I(f"v_pk_add_f32 v[{t}:{t+1}], v[{t}:{t+1}], 1.0 op_sel_hi:[1,0]"), I(f"v_pk_add_f32 v[{t+2}:{t+3}], v[{t+2}:{t+3}], 1.0 op_sel_hi:[1,0]"),
                 I(f"v_pk_mul_f32 v[{g}:{g+1}], v[{g}:{g+1}], v[{u}:{u+1}]"), I(f"v_pk_mul_f32 v[{g+2}:{g+3}], v[{g+2}:{g+3}], v[{u+2}:{u+3}]")],
                [I(f"v_rcp_f32 v{t+q}, v{t+q}") for q in range(4)],
                [I(f"v_pk_mul_f32 v[{t}:{t+1}], v[{t}:{t+1}], v[{g}:{g+1}]"), I(f"v_pk_mul_f32 v[{t+2}:{t+3}], v[{t+2}:{t+3}], v[{g+2}:{g+3}]")],
                [I(f"v_cvt_pk_bf16_f32 v{outreg}, v{t}, v{t+1}"), I(f"v_cvt_pk_bf16_f32 v{outreg+1}, v{t+2}, v{t+3}")],
            ]
        n = 0
        for p in range(3):
            for i in range(4):
                outb = 244 + 4 * (n & 1)
                a = silu(i, 2 * p, 0, outb)
                b = silu(i, 2 * p + 1, 1, outb + 2)
                for x, y in zip(a, b):
                    o += x + y
                A(f"buffer_store_dwordx4 v[{outb}:{outb+3}], v{VA}, s[{self.SH}:{self.SH+3}], s{self.S_T0} offen offset:{i*1024} {self.store_mod}", tag="hst")
                n += 1
            A(f"s_add_u32 s{self.S_T0}, s{self.S_T0}, 8192")
        for ip in range(2):
            outb = 244 + 4 * (n & 1)
            a = silu(2 * ip, 6, 0, outb)
            b = silu(2 * ip + 1, 6, 1, outb + 2)
            for x, y in zip(a, b):
                o += x + y
            A(f"buffer_store_dwordx4 v[{outb}:{outb+3}], v{VA}, s[{self.SH}:{self.SH+3}], s{self.S_T2} offen offset:{ip*1024} {self.store_mod}", tag="hst")
            n += 1
        o += self.stamp(4 + E)
        A("s_waitcnt vmcnt(0)")
        o += self.stamp(5 + E)
        return o

    def prof_out(self):
        if not self.prof:
            return []
        o = []
        A = lambda t: o.append(I(t))
        A(f"s_memrealtime s[{self.S_ST+2*15}:{self.S_ST+2*15+1}]")
        A("s_waitcnt lgkmcnt(0)")
        A(f"s_lshl_b32 s{self.S_T0}, s2, 2")
        A(f"s_add_u32 s{self.S_T0}, s{self.S_T0}, s{self.S_WAVE}")
        A(f"s_lshl_b32 s{self.S_T0}, s{self.S_T0}, 7")
        A("v_mov_b32 v0, 0")
        A("s_mov_b64 exec, 1")
        for n in range(16):
            A(f"v_mov_b32 v2, s{self.S_ST+2*n}")
            A(f"v_mov_b32 v3, s{self.S_ST+2*n+1}")
            A(f"buffer_store_dwordx2 v[2:3], v0, s[{self.S_PROF}:{self.S_PROF+3}], s{self.S_T0} offen offset:{n*8}")
        A("s_waitcnt vmcnt(0)")
        return o

    def build(self):
        st = State()
        head = self.setup() + self.prologue()
        head, m0 = fix_m0(head)
        head, st = insert_waits(head, st)
        head, _ = pad_hazards(head)
        steps = []
        prev = head
        for i in range(16):
            s, m0 = fix_m0(self.step(i), m0)
            s, st = insert_waits(s, st)
            s, npad = pad_hazards(s, pre=prev[-40:])
            steps.append(s)
            prev = s
        body, info = fold(steps, self.S_CNT, f"L_{self.name}_loop")
        tail, st = insert_waits(self.epilogue() + self.prof_out(), st)
        tail, _ = pad_hazards(tail, pre=prev[-40:])
        self.info = info
        lines = kernel_header(self.name)
        return "\n".join(lines) + "\n" + text_of(head + body + tail) + f"\nL_{self.name}_done:\n    s_endpgm\n"


def wrap(kernels, launches):
    out = []
    for (n, g, b, l) in launches:
        out.append(f"; @launch kernel={n} grid=({g},1,1) block=({b},1,1) lds={l}")
    out.append('.amdgcn_target "amdgcn-amd-amdhsa--gfx950"')
    out.append(".text")
    for (n, t, v) in kernels:
        out.append(t)
    out.append('.section .rodata,"a"')
    for (n, t, v) in kernels:
        out.append(".p2align 6")
        out.append(kernel_desc(n, *v))
    return "\n".join(out) + "\n"


if __name__ == "__main__":
    g = G1(S=2, prof=True)
    t = g.build()
    print(g.info)
    open("g1.s", "w").write(wrap([(g.name, t, (512, 102, 256))], [(g.name, 256, 256, g.lds)]))
```

```python
import sys
sys.path.insert(0, "work")
from asmlib import *
from gemm1 import srd, fix_m0

NAME = "gated_mix__ssm_conv_h3__swiglu_ffn__prompt_kernel"

WS_H, WS_H_SIZE = 0, 16 * 28 * 32768
WS_UR, WS_UR_SIZE = 16 << 20, 4 << 20
WS_G, WS_G_SIZE = 20 << 20, 2048 * 8
WS_Y2, WS_Y2_SIZE = 21 << 20, 4 << 20
WS_FLAG, WS_FLAG_SIZE = 26 << 20, 1024 * 512
WS_PROF = 32 << 20
P_Q, P_K, P_V, P_SH, P_SK, P_SD, P_WG, P_WU, P_WD, P_GW, P_OUT, P_DBG, P_WS = 4, 6, 8, 10, 12, 14, 16, 18, 20, 22, 24, 26, 28
S_WAVE, S_DV = 30, 31
SX, SW, SP, SD, SA, SB, SC, SF = 32, 36, 40, 44, 48, 52, 56, 60
S_XK, S_WK, S_XD, S_WD, S_PK, S_PD, S_CNT, S_TT, S_FT = 64, 65, 66, 67, 68, 69, 70, 71, 72
T0, T1, T2, T3 = 73, 74, 75, 76
S_WB, S_W0, S_LA, S_TH, S_DB = 77, 78, 79, 80, 81
S_PO, S_H0 = 82, 90
S_NC = 86
S_PX = 88
U0, U1, U2 = 92, 93, 94
S_CL = 95
S_HK = 96
S_STMP = 98
S_C = 100
VX, VW, VXR, VWR, VPU, VPD, VPX = 208, 216, 224, 226, 234, 235, 207
VLANE, VL16, VWD, VDR, VF, VPROF = 244, 245, 246, 250, 254, 255
VT = 192
L_W, L_A, L_B, LDS = 65536, 131072, 86016, 163840
CSTR = 4160
CW = 4 * CSTR + 4576
OOB = "0x80000000"
WSLAB = 64 * 7168


class Stream:
    def __init__(self):
        self.g = []

    def A(self, t, tag=None):
        self.g.append([I(t, tag)])

    def G(self, *ts):
        self.g.append([t if isinstance(t, Ins) else I(t) for t in ts])

    def ext(self, l):
        for x in l:
            self.g.append(x if isinstance(x, list) else [x])

    def flat(self):
        return [i for g in self.g for i in g]


def flat(groups):
    return [i for g in groups for i in g]


def cost(l):
    return sum(0.5 if x.pseudo in ("waittag", "waitds", "waitreg") else (2 if x.op in TRANS else 1) for x in l)


def spread(side, groups, g0, g1, cap=2):
    n = len(groups)
    if n == 0:
        return
    free = [max(0, cap - cost(side.get(g, []))) for g in range(g0, g1)]
    total = sum(cost(x) for x in groups)
    tf = sum(free)
    acc = used = 0.0
    k = 0
    for idx, g in enumerate(range(g0, g1)):
        acc += free[idx] * min(1.0, total / max(tf, 1)) if tf >= total else total / (g1 - g0)
        while k < n and used + cost(groups[k]) <= acc + 0.5:
            side.setdefault(g, []).extend(groups[k]); used += cost(groups[k]); k += 1
    while k < n:
        side.setdefault(g1 - 1, []).extend(groups[k]); k += 1


class Fused:
    def __init__(self, prof=False, hchk=6, hflag_r=1, stm="sc1", ldm="sc1", opts=None):
        self.prof = prof
        self.stm, self.ldm = stm, ldm
        self.hchk, self.hflag_r = hchk, hflag_r
        self.slow = []
        self.nst = 0
        self.npf = 0
        self.slot_over = {}
        self.o = opts or {}
        self.nk = self.o.get("nk", "nt")

    def stamp(self, n=None):
        if not self.prof:
            return []
        if n is None:
            n = self.nst
            self.nst += 1
        return [I(f"s_memtime s[{S_STMP}:{S_STMP+1}]"), I("s_waitcnt lgkmcnt(0)"), I(f"v_writelane_b32 v{VPROF}, s{S_STMP}, {n}")]

    def rstamp(self, lane):
        if not self.prof:
            return []
        return [I(f"s_memrealtime s[{S_STMP}:{S_STMP+1}]"), I("s_waitcnt lgkmcnt(0)"), I(f"v_writelane_b32 v{VPROF}, s{S_STMP}, {lane}")]

    def flag_store(self, kind, vtmp):
        off = {"h": 0, "u": 128, "y": 256}[kind]
        return [[I(f"v_mov_b32 v{vtmp}, s{S_NC}")], [I(f"v_mov_b32 v{vtmp+1}, s{S_NC+1}")],
                [I(f"buffer_store_dwordx2 v[{vtmp}:{vtmp+1}], v{VF}, s[{SF}:{SF+3}], 0 offen offset:{off} sc1", tag="flag")]]

    def poll_issue(self, vaddr, vdata):
        return [I(f"buffer_load_dwordx2 v[{vdata}:{vdata+1}], v{vaddr}, s[{SF}:{SF+3}], 0 offen sc1", tag="poll")]

    def poll_check(self, name, vaddr, vdata, tagread=False):
        cmp_ = f"v_cmp_ne_u64 vcc, 0, v[{vdata}:{vdata+1}]" if tagread else f"v_cmp_eq_u64 vcc, s[{S_NC}:{S_NC+1}], v[{vdata}:{vdata+1}]"
        self.slow += [I(f"L_slow_{name}:"), I("s_mov_b32 s3, 0x100000"), I(f"L_spin_{name}:"), I(f"s_sleep {self.o.get('sleep', 2)}"),
                      I(f"buffer_load_dwordx2 v[{vdata}:{vdata+1}], v{vaddr}, s[{SF}:{SF+3}], 0 offen sc1"),
                      I("s_sub_u32 s3, s3, 1"), I(f"s_cbranch_scc1 L_ok_{name}"),
                      I("s_waitcnt vmcnt(0)"), I(cmp_), I("s_nop 1"), I("s_cmp_eq_u64 vcc, -1"),
                      I(f"s_cbranch_scc0 L_spin_{name}"), I(f"s_branch L_ok_{name}")]
        return [I(cmp_), I("s_nop 1"), I("s_cmp_eq_u64 vcc, -1"), I(f"s_cbranch_scc0 L_slow_{name}"), I(f"L_ok_{name}:")]

    def switch_flags(self, vdata):
        s = Stream(); A = s.A
        A(f"v_readfirstlane_b32 s{S_NC}, v{vdata}")
        A(f"v_readfirstlane_b32 s{S_NC+1}, v{vdata+1}")
        s.ext([srd(SF, P_WS, WS_FLAG_SIZE, WS_FLAG)])
        A(f"s_lshl2_add_u32 s{T2}, s2, s{S_WAVE}")
        A(f"s_lshl_b32 s{T2}, s{T2}, 9")
        A(f"v_lshrrev_b32 v{VF}, 4, v{VLANE}")
        A(f"v_min_u32 v{VF}, 1, v{VF}")
        A(f"v_lshlrev_b32 v{VF}, 31, v{VF}")
        A(f"v_lshl_add_u32 v{VF}, v{VLANE}, 3, v{VF}")
        A(f"v_add_u32 v{VF}, s{T2}, v{VF}")
        return s

    def ur_poll_addr(self, v):
        s = Stream(); A = s.A
        A(f"s_lshr_b32 s{T2}, s2, 4")
        A(f"s_lshl3_add_u32 s{T2}, s{T2}, {224*4}")
        A(f"s_bfe_u32 s{T3}, s2, 0x20002")
        A(f"s_add_u32 s{T2}, s{T2}, s{T3}")
        A(f"s_lshl_b32 s{T2}, s{T2}, 9")
        A(f"s_add_u32 s{T2}, s{T2}, 128")
        A(f"v_and_b32 v{v}, 1, v{VLANE}")
        A(f"v_lshlrev_b32 v{v}, 11, v{v}")
        A(f"v_add_u32 v{v}, s{T2}, v{v}")
        return s

    def acc1(self, i, jp):
        if jp < 12:
            return "v", (jp * 4 + i) * 4
        return "a", 96 + ((jp - 12) * 4 + i) * 4

    def xf(self, buf, i, ks):
        b = buf * 32 + (i * 2 + ks) * 4
        return f"a[{b}:{b+3}]"

    def x_dma(self, step, mm):
        mod = self.o.get("n0", "") if step < self.o.get("n0steps", 0) else ""
        i = I(f"buffer_load_dwordx4 v{VX+mm}, s[{SX}:{SX+3}], s{S_XK} offen offset:{(mm&3)*1024} {mod} lds", tag=("x", step))
        i.arg = (S_XD, (mm >> 2) * 4096, ("x", step))
        o = [i]
        if mm == 7:
            o += [I(f"s_add_u32 s{S_XK}, s{S_XK}, 128"), I(f"s_xor_b32 s{S_XD}, s{S_XD}, 8192")]
        return o

    def w_dma(self, step, mm):
        mod = self.o.get("n0", "") if step < self.o.get("n0steps", 0) else ""
        i = I(f"buffer_load_dwordx4 v{VW+mm}, s[{SW}:{SW+3}], s{S_WK} offen offset:{(mm&3)*1024} {mod} lds", tag=("w", step))
        i.arg = (S_WD, (mm >> 2) * 4096, ("w", step))
        o = [i]
        if mm == 7:
            o += [I(f"s_add_u32 s{S_WK}, s{S_WK}, {WSLAB}"), I(f"s_xor_b32 s{S_WD}, s{S_WD}, 32768")]
        return o

    def w_reads(self, step, jp):
        slot = jp % 4
        o = []
        for ks in range(2):
            for hf in range(2):
                b = 64 + slot * 8 + ks * 4 + 2 * hf
                off = (step & 1) * 32768 + (jp & 1) * 16384 + ks * 8192 + hf * 1024
                o.append(I(f"ds_read_b64_tr_b16 a[{b}:{b+1}], v{VWR + (jp >> 1)} offset:{off}", tag=("wr", step, jp)))
        return o

    def x_reads(self, step):
        o = []
        for i in range(4):
            for ks in range(2):
                o.append(I(f"ds_read_b128 {self.xf(step & 1, i, ks)}, v{VXR+ks} offset:{(step&1)*8192 + i*2048}", tag=("xr", step)))
        return o

    def dummy(self):
        self.npf += 1
        return 236 + self.npf % 8

    def pf_u(self):
        return [I(f"buffer_load_dword v{self.dummy()}, v{VPU}, s[{SP}:{SP+3}], s{S_PK} offen", tag="pf"),
                I(f"s_add_u32 s{S_PK}, s{S_PK}, {WSLAB}")]

    def pf_x(self):
        return [I(f"buffer_load_dword v{self.dummy()}, v{VPX}, s[{SX}:{SX+3}], s{S_PX} offen", tag="pf"),
                I(f"s_add_u32 s{S_PX}, s{S_PX}, 128")]

    def pf_d(self):
        return [I(f"buffer_load_dword v{self.dummy()}, v{VPD}, s[{SD}:{SD+3}], s{S_PD} offen", tag="pf"),
                I(f"s_add_u32 s{S_PD}, s{S_PD}, {224*2048}")]

    def common_start(self):
        o = []
        A = lambda t, tag=None: o.append(I(t, tag))
        A("s_cmp_ge_u32 s2, 256")
        A("s_cbranch_scc1 L_done")
        A("s_load_dwordx2 s[4:5], s[0:1], 0")
        A("s_load_dwordx8 s[16:23], s[0:1], 56")
        A("s_load_dwordx4 s[24:27], s[0:1], 88")
        A("s_load_dwordx2 s[28:29], s[0:1], 104")
        A("s_load_dwordx2 s[6:7], s[0:1], 8")
        A("s_load_dwordx8 s[8:15], s[0:1], 16")
        A("s_getpc_b64 s[96:97]")
        A("L_pc:")
        A("v_min_u32 v1, 31, v0")
        A("v_lshlrev_b32 v1, 7, v1")
        A("global_load_dword v236, v1, s[96:97]", tag="pf")
        if self.prof:
            A(f"v_mov_b32 v{VPROF}, 0")
            A(f"s_memtime s[{S_STMP}:{S_STMP+1}]"); A(f"s_memrealtime s[{S_C}:{S_C+1}]")
            self.nst = 1
        A("v_lshrrev_b32 v1, 6, v0")
        A(f"v_and_b32 v{VLANE}, 63, v0")
        A(f"v_readfirstlane_b32 s{S_WAVE}, v1")
        A("s_cmp_ge_u32 s2, 224")
        A("s_cbranch_scc1 L_helper")
        return o

    def after_karg(self):
        o = []
        A = lambda t, tag=None: o.append(I(t, tag))
        A("s_waitcnt lgkmcnt(0)")
        if self.prof:
            A(f"v_writelane_b32 v{VPROF}, s{S_STMP}, 0"); A(f"v_writelane_b32 v{VPROF}, s{S_C}, 62")
        return o

    def misc_setup(self):
        o = []
        A = lambda t, tag=None: o.append(I(t, tag))
        A(f"s_lshl2_add_u32 s{T0}, s2, s{S_WAVE}")
        A(f"s_lshl_b32 s{T2}, s{T0}, 12")
        A(f"s_load_dwordx2 s[{S_HK}:{S_HK+1}], s[{P_SK}:{P_SK+1}], s{T2}")
        A(f"s_lshr_b32 s{T2}, s{T0}, 1")
        A(f"s_lshl_b32 s{T2}, s{T2}, 2")
        A(f"s_load_dword s{S_DV}, s[{P_SD}:{P_SD+1}], s{T2}")
        A(f"v_lshlrev_b32 v{VL16}, 4, v{VLANE}")
        o += srd(SF, P_DBG, 256)
        return o

    def g1_start(self):
        o = []
        A = lambda t, tag=None: o.append(I(t, tag))
        L = VLANE
        A(f"s_lshr_b32 s{T1}, s2, 3")
        A(f"s_and_b32 s{S_TT}, s{T1}, 3")
        A(f"s_and_b32 s{T2}, s2, 1")
        A(f"s_lshl2_add_u32 s{S_TT}, s{T2}, s{S_TT}")
        A(f"s_lshr_b32 s{S_FT}, s{T1}, 2")
        A(f"s_bfe_u32 s{T2}, s2, 0x20001")
        A(f"s_mul_i32 s{T2}, s{T2}, 7")
        A(f"s_add_u32 s{S_FT}, s{S_FT}, s{T2}")
        A(f"s_lshl2_add_u32 s{T0}, s{S_TT}, s{S_WAVE}")
        A(f"s_lshl_b32 s{T0}, s{T0}, 17")
        A(f"v_lshrrev_b32 v3, 3, v{L}")
        A("v_lshlrev_b32 v3, 11, v3")
        A(f"v_add_u32 v3, s{T0}, v3")
        A(f"v_and_b32 v4, 7, v{L}")
        A(f"v_lshrrev_b32 v5, 4, v{L}")
        A("v_xor_b32 v4, v4, v5")
        A("v_xor_b32 v6, 4, v4")
        A(f"v_lshl_add_u32 v{VX}, v4, 4, v3")
        A("v_lshl_add_u32 v6, v6, 4, v3")
        for mm in range(1, 8):
            A(f"v_add_u32 v{VX+mm}, {mm*16384 - (mm&3)*1024}, v{VX if mm % 2 == 0 else 6}")
        A(f"s_lshl_b32 s{S_XD}, s{S_WAVE}, 14")
        A(f"s_mov_b32 s{S_XK}, 0")
        A(f"s_mov_b32 s{S_WK}, 0")
        A(f"s_and_b32 s{T0}, s{S_WAVE}, 1")
        A(f"s_mul_i32 s{T0}, s{T0}, {32*7168}")
        A(f"s_lshl_b32 s{T3}, s{S_FT}, 8")
        A(f"s_add_u32 s{T0}, s{T0}, s{T3}")
        A(f"v_and_b32 v3, 15, v{L}")
        A("v_lshlrev_b32 v4, 1, v5")
        A("v_xor_b32 v3, v3, v4")
        A("v_mul_u32_u24 v4, 7168, v5")
        A(f"v_add_u32 v4, s{T0}, v4")
        A("v_xor_b32 v6, 8, v3")
        A(f"v_lshl_add_u32 v{VW}, v3, 4, v4")
        A("v_lshl_add_u32 v6, v6, 4, v4")
        for mm in range(1, 8):
            A(f"v_add_u32 v{VW+mm}, {mm*4*7168 - (mm&3)*1024}, v{VW if (mm >> 1) % 2 == 0 else 6}")
        A(f"s_lshl_b32 s{S_WD}, s{S_WAVE}, 13")
        A(f"s_add_u32 s{S_WD}, s{S_WD}, {L_W}")
        o += self.after_karg()
        o += self.stamp()
        o += srd(SX, P_Q, 2048 * 2048)
        A(f"s_cmp_ge_u32 s{S_WAVE}, 2")
        A(f"s_cselect_b32 s{SW}, s{P_WU}, s{P_WG}")
        A(f"s_cselect_b32 s{SW+1}, s{P_WU+1}, s{P_WG+1}")
        A(f"s_and_b32 s{SW+1}, s{SW+1}, 0xffff")
        A(f"s_mov_b32 s{SW+2}, {1024*7168}")
        A(f"s_mov_b32 s{SW+3}, 0x20000")
        for mm in range(8):
            o += self.x_dma(0, mm)
        for mm in range(8):
            o += self.w_dma(0, mm)
        o += self.stamp()
        ninit = self.o.get("ninit", 3)
        o += srd(SP, P_WU, 1024 * 7168)
        A(f"s_lshl2_add_u32 s{T0}, s2, s{S_WAVE}")
        A(f"s_lshl_b32 s{T0}, s{T0}, 9")
        A(f"s_add_u32 s{S_PK}, s{T0}, {WSLAB}")
        A(f"v_and_b32 v3, 3, v{L}")
        A("v_lshlrev_b32 v3, 7, v3")
        A(f"v_lshrrev_b32 v4, 2, v{L}")
        A(f"s_mov_b32 s{T2}, {WSLAB}")
        A(f"v_mul_lo_u32 v5, v4, s{T2}")
        A("v_add_u32 v5, v5, v3")
        A(f"v_cmp_le_u32 vcc, {ninit}, v4")
        A(f"v_mov_b32 v6, {OOB}")
        A("v_cndmask_b32 v5, v5, v6, vcc")
        A(f"buffer_load_dword v{self.dummy()}, v5, s[{SP}:{SP+3}], s{S_PK} offen", tag="pf")
        A(f"s_add_u32 s{S_PK}, s{S_PK}, {ninit*WSLAB}")
        A("v_min_u32 v4, 1, v4")
        A(f"v_lshl_add_u32 v{VPU}, v4, 31, v3")
        if self.o.get("xg1", True):
            A(f"s_mul_i32 s{T0}, s2, 9363")
            A(f"s_lshr_b32 s{T0}, s{T0}, 10")
            A(f"s_mul_i32 s{T2}, s{S_WAVE}, 3")
            A(f"s_add_u32 s{T0}, s{T0}, s{T2}")
            A(f"s_lshl_b32 s{T0}, s{T0}, 11")
            A(f"s_add_u32 s{S_PX}, s{T0}, 128")
            A("v_lshlrev_b32 v5, 4, v3")
            A(f"v_cmp_eq_u32 vcc, 6144, v5")
            A("v_cndmask_b32 v5, v5, v6, vcc")
            A(f"v_lshrrev_b32 v4, 2, v{L}")
            A("v_lshl_add_u32 v7, v4, 7, v5")
            A(f"v_cmp_le_u32 vcc, {ninit+1}, v4")
            A("v_cndmask_b32 v7, v7, v6, vcc")
            A(f"buffer_load_dword v{self.dummy()}, v7, s[{SX}:{SX+3}], s{S_PX} offen", tag="pf")
            A(f"s_add_u32 s{S_PX}, s{S_PX}, {(ninit+1)*128}")
            A("v_cmp_le_u32 vcc, 1, v4")
            A(f"v_cndmask_b32 v{VPX}, v5, v6, vcc")
        A(f"s_lshl2_add_u32 s{T0}, s{T1}, s{S_WAVE}")
        A(f"s_lshl_b32 s{T0}, s{T0}, 9")
        A(f"s_add_u32 s{T0}, s{T0}, 4096")
        A(f"v_add_u32 v3, s{T0}, v3")
        A("v_min_u32 v3, L_done-L_pc2, v3")
        A("s_getpc_b64 s[98:99]")
        A("L_pc2:")
        A(f"global_load_dword v{self.dummy()}, v3, s[98:99]", tag="pf")
        o += self.misc_setup()
        A(f"v_and_b32 v3, 15, v{L}")
        A(f"v_lshrrev_b32 v4, 4, v{L}")
        A("v_lshrrev_b32 v5, 1, v3")
        A("v_xor_b32 v4, v4, v5")
        A("v_lshlrev_b32 v4, 4, v4")
        A("v_lshl_add_u32 v4, v3, 7, v4")
        A(f"s_lshl_b32 s{T0}, s{S_WAVE}, 14")
        A(f"v_add_u32 v{VXR}, s{T0}, v4")
        A(f"v_xor_b32 v{VXR+1}, 64, v{VXR}")
        A(f"v_lshrrev_b32 v3, 4, v{L}")
        A(f"v_bfe_u32 v4, v{L}, 2, 2")
        A("v_lshl_add_u32 v5, v3, 3, v4")
        A("v_and_b32 v3, 1, v3")
        A("v_lshl_add_u32 v4, v3, 2, v4")
        A(f"v_and_b32 v3, 3, v{L}")
        A("v_lshlrev_b32 v3, 3, v3")
        A("v_lshl_add_u32 v3, v5, 8, v3")
        A(f"v_add_u32 v3, {L_W}, v3")
        for j in range(8):
            A(f"v_xor_b32 v5, {j}, v4")
            A(f"v_lshl_add_u32 v{VWR+j}, v5, 5, v3")
        o += self.stamp()
        o.append(WAITTAG([("x", 0), ("w", 0)]))
        A("s_barrier")
        o += self.stamp()
        o += self.w_reads(0, 0)
        o += self.x_reads(0)
        o += self.w_reads(0, 1)
        return o

    def wreg(self, blk):
        m = blk % 14
        if m < 6:
            return "a", 160 + 16 * m
        if m < 10:
            return "a", 96 + 16 * (m - 6)
        return "v", 160 + 16 * (m - 10)

    def wslot(self, blk):
        s = (blk & 1) if blk < 6 else (blk - 6) % 4
        s = self.slot_over.get(blk, s)
        return (L_A - L_B + 4096 * s) if s < 2 else 4096 * (s - 2)

    def g2_setup(self, vt):
        s = Stream(); A = s.A
        L = VLANE
        A(f"s_lshr_b32 s{U1}, s2, 3")
        A(f"s_and_b32 s{S_TH}, s{U1}, 3")
        A(f"s_and_b32 s{U2}, s2, 3")
        A(f"s_lshl2_add_u32 s{S_TH}, s{U2}, s{S_TH}")
        A(f"s_lshr_b32 s{S_DB}, s{U1}, 2")
        A(f"s_bfe_u32 s{U2}, s2, 0x10002")
        A(f"s_lshl3_add_u32 s{S_DB}, s{U2}, s{S_DB}")
        s.ext(srd(SD, P_WD, 3584 * 2048))
        A(f"s_lshl2_add_u32 s{U0}, s{S_TH}, s{S_WAVE}")
        A(f"s_mul_i32 s{U1}, s{U0}, {7*32768}")
        for m in range(4):
            A(f"s_add_u32 s{U0}, s{S_WAVE}, {m}")
            A(f"s_and_b32 s{U0}, s{U0}, 3")
            A(f"s_lshl_b32 s{S_PO+m}, s{U0}, 11")
            A(f"s_add_u32 s{S_PO+m}, s{S_PO+m}, s{U1}")
        A(f"s_mul_i32 s{S_WB}, s{S_WAVE}, {896*2048}")
        A(f"s_lshl_b32 s{S_PD}, s2, 11")
        A(f"s_add_u32 s{S_PD}, s{S_PD}, s{S_WB}")
        A(f"s_lshl_b32 s{U0}, s{S_DB}, 7")
        A(f"s_add_u32 s{S_WB}, s{S_WB}, s{U0}")
        A(f"s_lshl_b32 s{S_LA}, s{S_WAVE}, 13")
        A(f"s_add_u32 s{S_LA}, s{S_LA}, {L_B}")
        A(f"v_lshrrev_b32 v{vt}, 4, v{L}")
        A(f"v_min_u32 v{vt}, 1, v{vt}")
        A(f"v_lshlrev_b32 v{vt}, 31, v{vt}")
        A(f"v_lshl_add_u32 v{VPD}, v{L}, 7, v{vt}")
        A(f"v_lshrrev_b32 v{vt}, 3, v{L}")
        A(f"v_and_b32 v{vt+1}, 6, v{vt}")
        A(f"v_and_b32 v{vt+2}, 7, v{L}")
        A(f"v_xor_b32 v{vt+1}, v{vt+1}, v{vt+2}")
        A(f"v_lshlrev_b32 v{vt}, 11, v{vt}")
        A(f"v_lshl_add_u32 v{VWD}, v{vt+1}, 4, v{vt}")
        for m in range(1, 4):
            A(f"v_add_u32 v{VWD+m}, {m*(16384-1024)}, v{VWD}")
        A(f"v_lshrrev_b32 v{vt}, 2, v{L}")
        A(f"v_bfe_u32 v{vt+1}, v{L}, 3, 2")
        A(f"v_and_b32 v{vt+2}, 3, v{L}")
        A(f"v_lshlrev_b32 v{vt}, 7, v{vt}")
        A(f"v_lshl_add_u32 v{vt}, v{vt+2}, 3, v{vt}")
        A(f"v_add_u32 v{vt}, s{S_LA}, v{vt}")
        for j in range(4):
            A(f"v_xor_b32 v{vt+2}, {j}, v{vt+1}")
            A(f"v_lshl_add_u32 v{VDR+j}, v{vt+2}, 5, v{vt}")
        return s

    def wd_dma(self, blk, after=None):
        out = []
        for m in range(4):
            g = []
            if m == 0:
                if after is not None:
                    g.append(WAITDS(("wdr", after)))
                g.append(I(f"s_add_u32 s{S_W0}, s{S_WB}, {blk*32*2048}"))
            i = I(f"buffer_load_dwordx4 v{VWD+m}, s[{SD}:{SD+3}], s{S_W0} offen offset:{m*1024} lds", tag=("wd", blk))
            i.arg = (S_LA, self.wslot(blk), ("wd", blk))
            g.append(i)
            out.append(g)
        return out

    def wd_reads(self, blk):
        f, b0 = self.wreg(blk)
        out = [[WAITTAG(("wd", blk))]]
        for j in range(4):
            for hf in range(2):
                b = b0 + 4 * j + 2 * hf
                out.append([I(f"ds_read_b64_tr_b16 {f}[{b}:{b+1}], v{VDR+j} offset:{self.wslot(blk) + hf*2048}", tag=("wdr", blk))])
        return out

    CVA, CVG, CVT, CAD, CACC = 32, 33, 34, 44, 0

    def cFA(self, buf, q):
        return ("a", buf * 64 + q * 4)

    def cFG(self, buf, e):
        return ("a", 32 + e * 4) if buf == 0 else ("v", 48 + e * 4)

    def conv_hk_setup(self, vt):
        s = Stream(); A = s.A
        s.ext(srd(SB, P_SK, 1024 * 4096))
        A(f"s_lshl2_add_u32 s{T0}, s2, s{S_WAVE}")
        A(f"s_mul_i32 s{S_CL}, s{S_WAVE}, {CW}")
        A(f"s_lshl_b32 s{T1}, s{T0}, 12")
        A(f"v_lshrrev_b32 v{vt}, 5, v{VLANE}")
        A(f"v_lshlrev_b32 v{vt}, 31, v{vt}")
        A(f"v_lshl_add_u32 v{vt}, v{VLANE}, 7, v{vt}")
        A(f"buffer_load_dword v{self.dummy()}, v{vt}, s[{SB}:{SB+3}], s{T1} offen {self.nk}", tag="pf")
        return s

    def conv_hk(self, vt):
        s = Stream(); A = s.A
        for c in range(4):
            A(f"v_add_u32 v{vt}, {2*c}, v{VL16}")
            for m in range(4):
                i = I(f"buffer_load_dwordx4 v{vt}, s[{SB}:{SB+3}], s{T1} offen offset:{m*1024} lds", tag="hk")
                i.arg = (S_CL, c * CSTR + 32, "hk")
                s.G(i)
        return s

    def conv_ur_loads(self):
        s = Stream(); A = s.A
        s.ext([srd(SA, P_WS, WS_UR_SIZE, WS_UR)])
        for m in range(4):
            A(f"buffer_load_dwordx4 a[{4*m}:{4*m+3}], v{VL16}, s[{SA}:{SA+3}], s{T1} offen offset:{m*1024} {self.ldm}", tag="ur")
        return s

    def conv_prep(self):
        o = []
        A = lambda t, tag=None: o.append(I(t, tag))
        VT_, L = self.CVT, VLANE
        Z = 48
        A(f"v_add_u32 v{VT_}, s{S_CL}, v{VL16}")
        for m in range(4):
            A(f"ds_write_b128 v{VT_}, a[{4*m}:{4*m+3}] offset:{4*CSTR + 1024*m}")
        for q in range(4):
            A(f"v_mov_b32 v{Z+q}, 0")
        A(f"v_min_u32 v{VT_+2}, 29, v{L}")
        A(f"v_lshlrev_b32 v{VT_+2}, 4, v{VT_+2}")
        A(f"v_add_u32 v{VT_+2}, s{S_CL}, v{VT_+2}")
        A(f"ds_write_b128 v{VT_+2}, v[{Z}:{Z+3}] offset:{4*CSTR+4096}")
        A(f"v_and_b32 v{VT_+3}, 3, v{L}")
        A(f"v_mul_u32_u24 v{VT_+2}, {CSTR}, v{VT_+3}")
        A(f"v_add_u32 v{VT_+2}, s{S_CL}, v{VT_+2}")
        A(f"ds_write_b128 v{VT_+2}, v[{Z}:{Z+3}]")
        A(f"v_sub_u32 v{VT_+3}, 3, v{VT_+3}")
        A(f"v_lshlrev_b32 v{VT_+3}, 4, v{VT_+3}")
        A(f"v_lshlrev_b64 v[{Z+2}:{Z+3}], v{VT_+3}, s[{S_HK}:{S_HK+1}]")
        A(f"v_lshlrev_b64 v[{Z+2}:{Z+3}], 16, v[{Z+2}:{Z+3}]")
        A(f"ds_write_b128 v{VT_+2}, v[{Z}:{Z+3}] offset:16")
        A(f"v_and_b32 v{VT_+2}, 15, v{L}")
        A(f"v_add_u32 v{VT_+3}, 1, v{VT_+2}")
        A(f"v_and_b32 v{VT_+4}, 3, v{VT_+3}")
        A(f"v_and_b32 v{VT_+3}, 28, v{VT_+3}")
        A(f"v_lshrrev_b32 v{VT_+5}, 4, v{L}")
        A(f"v_lshl_add_u32 v{VT_+3}, v{VT_+5}, 3, v{VT_+3}")
        A(f"v_mul_u32_u24 v{VT_+4}, {CSTR}, v{VT_+4}")
        A(f"v_lshl_add_u32 v{self.CVA}, v{VT_+3}, 1, v{VT_+4}")
        A(f"v_add_u32 v{self.CVA}, s{S_CL}, v{self.CVA}")
        A(f"v_lshlrev_b32 v{VT_+3}, 5, v{VT_+2}")
        A(f"v_sub_u32 v{VT_+3}, {4*CSTR+480}, v{VT_+3}")
        A(f"v_lshl_add_u32 v{VT_+3}, v{VT_+5}, 4, v{VT_+3}")
        A(f"v_add_u32 v{self.CVG}, s{S_CL}, v{VT_+3}")
        A(f"s_and_b32 s{T2}, s{T0}, 1")
        A(f"s_lshl_b32 s{T2}, s{T2}, 4")
        A(f"s_lshr_b32 s{T3}, s{S_DV}, s{T2}")
        A(f"s_and_b32 s{T3}, s{T3}, 0xffff")
        A(f"v_sub_u32 v{VT_+3}, 15, v{VT_+2}")
        A(f"v_lshlrev_b32 v{VT_+4}, 3, v{VT_+5}")
        A(f"v_sub_u32 v{VT_+3}, v{VT_+3}, v{VT_+4}")
        A(f"v_and_b32 v{VT_+4}, 1, v{VT_+3}")
        A(f"v_lshlrev_b32 v{VT_+4}, 4, v{VT_+4}")
        A(f"v_lshlrev_b32 v{VT_+4}, v{VT_+4}, s{T3}")
        A(f"v_ashrrev_i32 v{VT_+3}, 1, v{VT_+3}")
        for q in range(4):
            A(f"v_cmp_eq_u32 vcc, {q}, v{VT_+3}")
            A(f"v_cndmask_b32 v{self.CAD+q}, 0, v{VT_+4}, vcc")
        return o

    def conv_reads(self, r):
        buf = r & 1
        out = []
        for n in range(8):
            f, fa = self.cFA(buf, n)
            off = 64 * (8 * n + r)
            out.append(I(f"ds_read_b64 {f}[{fa}:{fa+1}], v{self.CVA} offset:{off}", tag=("cr", r)))
            out.append(I(f"ds_read_b64 {f}[{fa+2}:{fa+3}], v{self.CVA} offset:{off+8}", tag=("cr", r)))
            f, fg = self.cFG(buf, n)
            out.append(I(f"ds_read_b128 {f}[{fg}:{fg+3}], v{self.CVG} offset:{2*(1792 - 256*n + 32*r)}", tag=("cr", r)))
        return out

    def conv_mfmas(self, r):
        buf = r & 1
        mf = []
        for c in range(8):
            acc = f"v[{self.CACC+4*c}:{self.CACC+4*c+3}]"
            if r == 0:
                f, fg = self.cFG(buf, c)
                mf.append(I(f"v_mfma_f32_16x16x32_bf16 {acc}, v[{self.CAD}:{self.CAD+3}], {f}[{fg}:{fg+3}], 0"))
            for q in range(c + 1):
                f1, fa = self.cFA(buf, q); f2, fg = self.cFG(buf, c - q)
                mf.append(I(f"v_mfma_f32_16x16x32_bf16 {acc}, {f1}[{fa}:{fa+3}], {f2}[{fg}:{fg+3}], {acc}"))
        return mf

    def conv_out(self):
        o = []
        A = lambda t, tag=None: o.append(I(t, tag))
        VT_, L = self.CVT, VLANE
        o += srd(SB, P_WS, WS_Y2_SIZE, WS_Y2)
        A(f"v_and_b32 v{VT_}, 15, v{L}")
        A(f"v_lshrrev_b32 v{VT_+1}, 4, v{L}")
        A(f"v_lshlrev_b32 v{VT_+2}, 5, v{VT_}")
        A(f"v_lshl_add_u32 v{VT_+2}, v{VT_+1}, 3, v{VT_+2}")
        A(f"v_add_u32 v{VT_+2}, s{S_CL}, v{VT_+2}")
        for c in range(8):
            a = self.CACC + 4 * c
            A(f"v_cvt_pk_bf16_f32 v{a}, v{a}, v{a+1}")
            A(f"v_cvt_pk_bf16_f32 v{a+1}, v{a+2}, v{a+3}")
            A(f"ds_write_b64 v{VT_+2}, v[{a}:{a+1}] offset:{c*512}")
        A(f"v_bfe_u32 v{VT_}, v{L}, 2, 2")
        A(f"v_mul_u32_u24 v{VT_}, {CW}, v{VT_}")
        A(f"v_lshl_add_u32 v{VT_}, v{VT_+1}, 6, v{VT_}")
        A(f"v_and_b32 v{VT_+1}, 3, v{L}")
        A(f"v_lshl_add_u32 v{VT_}, v{VT_+1}, 3, v{VT_}")
        A(f"s_lshl_b32 s{T1}, s{S_WAVE}, 10")
        A(f"v_add_u32 v{VT_}, s{T1}, v{VT_}")
        A(f"s_lshl2_add_u32 s{T1}, s2, s{S_WAVE}")
        A(f"s_lshl_b32 s{T1}, s{T1}, 12")
        o.append(WAITDS())
        A("s_barrier")
        R = 48
        for m in range(4):
            a = R + 4 * m
            A(f"ds_read_b64_tr_b16 v[{a}:{a+1}], v{VT_} offset:{256*m}")
            A(f"ds_read_b64_tr_b16 v[{a+2}:{a+3}], v{VT_} offset:{256*m+32}")
        for m in range(4):
            a = R + 4 * m
            A(f"buffer_store_dwordx4 v[{a}:{a+3}], v{VL16}, s[{SB}:{SB+3}], s{T1} offen offset:{m*1024} {self.stm}", tag="y2st")
        return o

    def g_streams(self):
        Q, GW, Z = 96, 112, 120
        L = VLANE
        gl = Stream(); A = gl.A
        gl.ext(srd(SA, P_GW, 2048))
        A(f"s_lshl2_add_u32 s{T2}, s2, s{S_WAVE}")
        A(f"s_lshl_b32 s{T2}, s{T2}, 12")
        for n in range(4):
            A(f"buffer_load_dwordx4 v[{Q+4*n}:{Q+4*n+3}], v{VL16}, s[{SX}:{SX+3}], s{T2} offen offset:{n*1024}", tag="gl")
        for n in range(2):
            A(f"buffer_load_dwordx4 v[{GW+4*n}:{GW+4*n+3}], v{VL16}, s[{SA}:{SA+3}], 0 offen offset:{n*1024}", tag="gl")
        gs = Stream(); A = gs.A
        gs.ext([srd(SA, P_WS, WS_G_SIZE, WS_G)])
        for rr in range(2):
            A(f"v_mov_b32 v{Z+rr}, 0")
        for n in range(8):
            for rr in range(2):
                A(f"v_dot2c_f32_bf16 v{Z+rr}, v{Q+8*rr+n}, v{GW+n}")
        A("s_nop 2")
        for sh in ("row_shr:1", "row_shr:2", "row_shr:4", "row_shr:8", "row_bcast:15 row_mask:0xa", "row_bcast:31 row_mask:0xc"):
            for rr in range(2):
                bc = " bound_ctrl:0" if sh.startswith("row_shr") else ""
                A(f"v_add_f32_dpp v{Z+rr}, v{Z+rr}, v{Z+rr} {sh}{bc}")
        A(f"v_cvt_pk_bf16_f32 v{Z+2}, v{Z}, v{Z+1}")
        A(f"v_lshlrev_b32 v{Z}, 16, v{Z+2}")
        A(f"v_and_b32 v{Z+1}, 0xffff0000, v{Z+2}")
        for rr in range(2):
            A(f"v_mul_f32 v{Z+rr}, 0xbfb8aa3b, v{Z+rr}")
        for rr in range(2):
            A(f"v_exp_f32 v{Z+rr}, v{Z+rr}")
        for rr in range(2):
            A(f"v_add_f32 v{Z+rr}, 1.0, v{Z+rr}")
        for rr in range(2):
            A(f"v_rcp_f32 v{Z+rr}, v{Z+rr}")
        A(f"v_cvt_pk_bf16_f32 v{Z+2}, v{Z}, v{Z+1}")
        A(f"v_lshlrev_b32 v{Z+4}, 16, v{Z+2}")
        A(f"v_and_b32 v{Z+6}, 0xffff0000, v{Z+2}")
        A(f"v_sub_f32 v{Z}, 1.0, v{Z+4}")
        A(f"v_sub_f32 v{Z+1}, 1.0, v{Z+6}")
        A(f"v_cvt_pk_bf16_f32 v{Z+2}, v{Z}, v{Z+1}")
        A(f"v_lshlrev_b32 v{Z+5}, 16, v{Z+2}")
        A(f"v_and_b32 v{Z+7}, 0xffff0000, v{Z+2}")
        A(f"s_lshr_b32 s{T2}, s{T2}, 8")
        A(f"v_add_u32 v{Z}, 1, v{L}")
        A(f"v_and_b32 v{Z}, 63, v{Z}")
        A(f"v_min_u32 v{Z}, 1, v{Z}")
        A(f"v_lshlrev_b32 v{Z}, 31, v{Z}")
        A(f"buffer_store_dwordx4 v[{Z+4}:{Z+7}], v{Z}, s[{SA}:{SA+3}], s{T2} offen {self.stm}", tag="gst")
        return gl, gs

    def g1_steps(self):
        steps = []
        wpos = self.o.get("wpos", [(0, 118), (0, 126), (1, 6), (1, 14), (1, 22), (1, 30), (1, 38), (1, 46)])
        xpos = self.o.get("xpos", [54, 62, 70, 78, 86, 94, 102, 110])
        pg = self.o.get("pfgap", 50)
        ninit = self.o.get("ninit", 3)
        pfu_steps = self.o.get("pfu", [0, 1] + list(range(1, 16)))[:15 - ninit]
        pfd_steps = self.o.get("pfd", [2, 5, 8, 11])
        d0 = self.o.get("wd0", 5)
        dma_plan = {d0 + b: [b] for b in range(8)}
        rd_plan = {d0 + 2 + b: [b] for b in range(6)}
        if self.o.get("nowdpre"):
            dma_plan = {}; rd_plan = {}
        for i in range(16):
            mf = []
            side = {}
            add = lambda g, l: side.setdefault(g, []).extend(l)
            for jp in range(16):
                for ii in range(4):
                    for ks in range(2):
                        b = 64 + (jp % 4) * 8 + ks * 4
                        f, a = self.acc1(ii, jp)
                        c = "0" if (i == 0 and ks == 0) else f"{f}[{a}:{a+3}]"
                        mf.append(I(f"v_mfma_f32_16x16x32_bf16 {f}[{a}:{a+3}], a[{b}:{b+3}], {self.xf(i & 1, ii, ks)}, {c}"))
            last = i == 15
            for jp in range(16):
                if jp <= 11:
                    for n, r in enumerate(self.w_reads(i, jp + 2)):
                        add(8 * jp + n, [r])
                elif jp == 12:
                    for n, r in enumerate(self.w_reads(i, 14) + self.w_reads(i, 15)):
                        add(8 * jp + n, [r])
                elif jp >= 14 and not last:
                    for n, r in enumerate(self.w_reads(i + 1, jp - 14)):
                        add(8 * jp + 1 + n, [r])
            if not last:
                add(111, [WAITDS(), WAITTAG(("w", i + 1))])
                side[112] = [I("s_barrier")] + side.get(112, [])
                xr = self.x_reads(i + 1)
                if i == 0:
                    xg = [104, 105, 106, 107, 108, 109, 110, 110]
                elif i == 1:
                    xg = [52, 53, 60, 61, 68, 69, 76, 77]
                else:
                    xg = [8 * (1 + n // 2) + 4 + (n % 2) for n in range(8)]
                add(xg[0] - 1, [WAITTAG(("x", i + 1))])
                for n, r in enumerate(xr):
                    add(xg[n], [r])
            if i == 0:
                for mm in range(8):
                    add(4 + 2 * mm, self.x_dma(1, mm))
                for mm in range(8):
                    add(20 + 3 * mm, self.w_dma(1, mm))
                add(53, [WAITDS(("xr", 0))])
                for mm in range(8):
                    add(54 + 6 * mm, self.x_dma(2, mm))
                for mm, (so, g) in enumerate(wpos):
                    if so == 0:
                        add(g, self.w_dma(2, mm))
            elif i == 1:
                add(3, [WAITDS(("xr", 1))])
                k = 0
                for mm, (so, g) in enumerate(wpos):
                    if so == 1:
                        add(4 + 3 * k, self.w_dma(2, mm)); k += 1
                for mm in range(8):
                    add(24 + 3 * mm, self.x_dma(3, mm))
                add(83, [WAITDS(("xr", 2))])
                for mm in range(8):
                    add(84 + 3 * mm, self.x_dma(4, mm))
                for mm, (so, g) in enumerate(wpos):
                    if so == 0:
                        add(g, self.w_dma(3, mm))
            else:
                if i + 3 < 16:
                    add(xpos[0] - 1, [WAITDS(("xr", i + 1))])
                    for mm in range(8):
                        add(xpos[mm], self.x_dma(i + 3, mm))
                for mm, (so, g) in enumerate(wpos):
                    st = i + 2 - so
                    if st < 16:
                        add(g, self.w_dma(st, mm))
            for n_, s in enumerate(pfu_steps):
                if s == i:
                    add(pg, self.pf_u())
                    if self.o.get("xg1", True) and n_ < len(pfu_steps) - 1:
                        add(pg, self.pf_x())
            if i in pfd_steps:
                add(pg + 1, self.pf_d())
            for jp in range(16):
                add(8 * jp - 1, [WAITDS(("wr", i, jp))])
            if i == 1:
                spread(side, self.g2_setup(VT).g, 0, pg)
            for blk in rd_plan.get(i, []):
                spread(side, self.wd_reads(blk), 56, 84)
            for blk in dma_plan.get(i, []):
                spread(side, self.wd_dma(blk, blk - 2 if blk >= 2 else None), 88, 126)
            if i == 3:
                add(8, [I(f"v_mov_b32 v{VT}, 0")])
                add(pg + 2, self.poll_issue(VT, VT + 2))
            if i == 4:
                add(60, self.poll_check("nc", VT, VT + 2, tagread=True))
                spread(side, self.switch_flags(VT + 2).g + self.ur_poll_addr(VT).g, 61, 110)
            if i == 12:
                spread(side, self.conv_hk_setup(VT + 4).g, 10, pg + 3)
            if i == 14:
                hk = self.conv_hk(VT + 4).g
                spread(side, hk[:3], 114, 127)
                self.hk_rest = hk[3:]
            if i == 15:
                spread(side, self.hk_rest, 0, 80)
                if not self.o.get("urlate", True):
                    add(30, self.poll_issue(VT, VT + 2))
                    add(90, self.poll_check("ur", VT, VT + 2))
                    spread(side, self.conv_ur_loads().g, 91, 125)
            st = interleave(mf, side)
            if self.prof and self.o.get("fine") and i % 2 == 1:
                st += self.stamp()
            steps.append(st)
        return steps

    def g1_epilogue(self):
        o = []
        A = lambda t, tag=None: o.append(I(t, tag))
        o.append(WAITDS())
        A("s_barrier")
        o += srd(SC, P_WS, WS_H_SIZE, WS_H)
        A(f"s_lshr_b32 s{U1}, s{S_WAVE}, 1")
        A(f"s_lshl1_add_u32 s{U0}, s{S_TT}, s{U1}")
        A(f"s_mul_i32 s{U0}, s{U0}, 28")
        A(f"s_add_u32 s{U0}, s{U0}, s{S_FT}")
        A(f"s_lshl_b32 s{U0}, s{U0}, 15")
        A(f"s_and_b32 s{U1}, s{S_WAVE}, 1")
        A(f"s_lshl_b32 s{U1}, s{U1}, 12")
        A(f"s_add_u32 s{U0}, s{U0}, s{U1}")
        A(f"s_mov_b32 s{S_C}, 0xbfb8aa3b")
        A(f"s_mov_b32 s{S_C+1}, 0xbfb8aa3b")
        T = 208

        def vreg(i, jp):
            f, a = self.acc1(i, jp)
            return a if f == "v" else a - 96

        def silu(i, j, tset, outreg):
            g = vreg(i, 2 * j); u = vreg(i, 2 * j + 1)
            t = T + 4 * tset
            c = S_C
            return [
                [I(f"v_pk_mul_f32 v[{t}:{t+1}], v[{g}:{g+1}], s[{c}:{c+1}]"), I(f"v_pk_mul_f32 v[{t+2}:{t+3}], v[{g+2}:{g+3}], s[{c}:{c+1}]")],
                [I(f"v_exp_f32 v{t+q}, v{t+q}") for q in range(4)],
                [I(f"v_pk_add_f32 v[{t}:{t+1}], v[{t}:{t+1}], 1.0 op_sel_hi:[1,0]"), I(f"v_pk_add_f32 v[{t+2}:{t+3}], v[{t+2}:{t+3}], 1.0 op_sel_hi:[1,0]"),
                 I(f"v_pk_mul_f32 v[{g}:{g+1}], v[{g}:{g+1}], v[{u}:{u+1}]"), I(f"v_pk_mul_f32 v[{g+2}:{g+3}], v[{g+2}:{g+3}], v[{u+2}:{u+3}]")],
                [I(f"v_rcp_f32 v{t+q}, v{t+q}") for q in range(4)],
                [I(f"v_pk_mul_f32 v[{t}:{t+1}], v[{t}:{t+1}], v[{g}:{g+1}]"), I(f"v_pk_mul_f32 v[{t+2}:{t+3}], v[{t+2}:{t+3}], v[{g+2}:{g+3}]")],
                [I(f"v_cvt_pk_bf16_f32 v{outreg}, v{t}, v{t+1}"), I(f"v_cvt_pk_bf16_f32 v{outreg+1}, v{t+2}, v{t+3}")],
            ]
        extra = self.wd_dma(8) + self.wd_dma(9)
        n = 0
        for p in range(4):
            if p == 3:
                for r in range(64):
                    A(f"v_accvgpr_read_b32 v{r}, a{96+r}")
            for i in range(4):
                outb = 216 + 4 * (n & 1)
                a = silu(i, 2 * p, 0, outb)
                b = silu(i, 2 * p + 1, 1, outb + 2)
                for x, y in zip(a, b):
                    o += x + y
                A(f"buffer_store_dwordx4 v[{outb}:{outb+3}], v{VL16}, s[{SC}:{SC+3}], s{U0} offen offset:{i*1024} {self.stm}", tag="hst")
                if extra:
                    o += extra.pop(0)
                if self.o.get("urlate", True):
                    if n == self.o.get("urn", 12) - 3:
                        o += self.poll_issue(VT, VT + 2)
                    if n == self.o.get("urn", 12):
                        o += self.poll_check("ur", VT, VT + 2) + self.conv_ur_loads().flat()
                n += 1
            if p < 3:
                A(f"s_add_u32 s{U0}, s{U0}, 8192")
        return o

    def helper(self):
        o = [I("L_helper:")]
        A = lambda t, tag=None: o.append(I(t, tag))
        L = VLANE
        VPWv, VPXv, AD = 8, 9, 10
        SH, C = 16, 24
        RAW = (40, 80)
        KU, VU, AC, O = 120, 124, 128, 160
        S_PW = S_XK
        A(f"s_sub_u32 s{T0}, s2, 224")
        A(f"s_lshl2_add_u32 s{T1}, s{T0}, s{S_WAVE}")
        A(f"s_mul_i32 s{S_PW}, s{T1}, 3584")
        A(f"s_add_u32 s{S_PW}, s{S_PW}, {WSLAB}")
        A(f"s_lshl_b32 s{S_PX}, s{T1}, 15")
        A(f"s_add_u32 s{S_PX}, s{S_PX}, 128")
        A(f"v_cmp_le_u32 vcc, 28, v{L}")
        A(f"v_subrev_u32 v3, 28, v{L}")
        A(f"v_cndmask_b32 v3, v{L}, v3, vcc")
        A(f"v_mov_b32 v4, {WSLAB}")
        A("v_cndmask_b32 v4, 0, v4, vcc")
        A("v_lshl_add_u32 v4, v3, 7, v4")
        A("v_cmp_le_u32 vcc, 28, v3")
        A(f"v_mov_b32 v5, {OOB}")
        A(f"v_cndmask_b32 v{VPWv}, v4, v5, vcc")
        A(f"v_and_b32 v3, 15, v{L}")
        A(f"v_lshrrev_b32 v4, 4, v{L}")
        A("v_lshlrev_b32 v5, 11, v3")
        A(f"v_lshl_add_u32 v{VPXv}, v4, 7, v5")
        o += self.after_karg()
        o += srd(SW, P_WG, 1024 * 7168)
        o += srd(SX, P_Q, 2048 * 2048)

        def pw():
            return [I(f"buffer_load_dword v{self.dummy()}, v{VPWv}, s[{SW}:{SW+3}], s{S_PW} offen", tag="pf"),
                    I(f"s_add_u32 s{S_PW}, s{S_PW}, {2*WSLAB}")]

        def px():
            if self.o.get("xg1", True):
                return []
            return [I(f"buffer_load_dword v{self.dummy()}, v{VPXv}, s[{SX}:{SX+3}], s{S_PX} offen", tag="pf"),
                    I(f"s_add_u32 s{S_PX}, s{S_PX}, 512")]
        o += px() + pw() + pw() + px()
        o += self.misc_setup()
        A(f"s_lshl2_add_u32 s{T2}, s2, s{S_WAVE}")
        A(f"s_cmp_lg_u32 s{T2}, {224*4}")
        A("s_cbranch_scc1 L_notag")
        A(f"s_memrealtime s[{S_NC}:{S_NC+1}]")
        A(f"v_lshlrev_b32 v14, 31, v{L}")
        A(f"v_min_u32 v14, 1, v{L}")
        A("v_lshlrev_b32 v14, 31, v14")
        A("s_waitcnt lgkmcnt(0)")
        A(f"v_mov_b32 v16, s{S_NC}")
        A(f"v_mov_b32 v17, s{S_NC+1}")
        A(f"buffer_store_dwordx2 v[16:17], v14, s[{SF}:{SF+3}], 0 offen sc1")
        o[-1].pseudo = "nocount"
        A("L_notag:")
        A(f"s_sub_u32 s{T0}, s2, 224")
        A(f"v_and_b32 v3, 15, v{L}")
        o += pw()
        o += srd(SA, P_K, 2048 * 2048) + srd(SB, P_V, 2048 * 2048) + srd(SC, P_SH, 8192)
        A(f"s_lshr_b32 s{T1}, s{T0}, 1")
        A(f"s_and_b32 s{T0}, s{T0}, 1")
        A(f"s_lshl2_add_u32 s{T2}, s{T0}, s{S_WAVE}")
        A(f"s_lshl_b32 s{T3}, s{T2}, 19")
        A(f"v_lshlrev_b32 v{AD}, 14, v4")
        A(f"v_lshl_add_u32 v{AD}, v3, 3, v{AD}")
        A(f"v_add_u32 v{AD}, s{T3}, v{AD}")
        A(f"s_lshl_b32 s{T3}, s{T1}, 7")
        A(f"v_add_u32 v{AD}, s{T3}, v{AD}")
        A(f"s_lshl_b32 s{T3}, s{T1}, 9")
        A(f"v_lshlrev_b32 v{AD+1}, 5, v3")
        A(f"buffer_load_dwordx4 v[{SH}:{SH+3}], v{AD+1}, s[{SC}:{SC+3}], s{T3} offen")
        A(f"buffer_load_dwordx4 v[{SH+4}:{SH+7}], v{AD+1}, s[{SC}:{SC+3}], s{T3} offen offset:16")
        A(f"s_lshl_b32 s{T3}, s{S_WAVE}, 5")
        A(f"s_sub_u32 s{T3}, 127, s{T3}")
        A(f"v_sub_u32 v{AD+2}, s{T3}, v4")
        A(f"v_lshlrev_b32 v{AD+3}, 13, v3")
        A("v_and_b32 v7, 7, v3")

        def loads(buf):
            K = RAW[buf]; V = K + 22
            g = []
            for r in range(11):
                if r < 3:
                    g.append([I(f"v_subrev_u32 v{AD+1}, {(3-r)*2048}, v{AD}"), I(f"v_min_u32 v{AD+1}, {OOB}, v{AD+1}"),
                              I(f"buffer_load_dwordx2 v[{K+2*r}:{K+2*r+1}], v{AD+1}, s[{SA}:{SA+3}], 0 offen {self.nk}")])
                else:
                    rr = r - 3
                    g.append(([I(f"s_movk_i32 s{T3}, {(rr // 2) * 4096}")] if rr % 2 == 0 else []) +
                             [I(f"buffer_load_dwordx2 v[{K+2*r}:{K+2*r+1}], v{AD}, s[{SA}:{SA+3}], s{T3} offen offset:{(rr % 2)*2048} {self.nk}")])
                    g.append([I(f"buffer_load_dwordx2 v[{V+2*rr}:{V+2*rr+1}], v{AD}, s[{SB}:{SB+3}], s{T3} offen offset:{(rr % 2)*2048} {self.nk}")])
            g[-1].append(I(f"v_add_u32 v{AD}, {32*2048}, v{AD}"))
            return g

        def compute(buf):
            c_ = []
            A = lambda t, tag=None: c_.append(I(t, tag))

            def unpack(dst, src):
                A(f"v_lshlrev_b32 v{dst}, 16, v{src}")
                A(f"v_and_b32 v{dst+1}, 0xffff0000, v{src}")
                A(f"v_lshlrev_b32 v{dst+2}, 16, v{src+1}")
                A(f"v_and_b32 v{dst+3}, 0xffff0000, v{src+1}")
            K = RAW[buf]; V = K + 22
            for r in range(11):
                unpack(KU, K + 2 * r)
                for j in range(4):
                    e = r - j
                    if e < 0 or e > 7:
                        continue
                    c = C + (3 - j) * 4
                    a = AC + 4 * e
                    for h in range(2):
                        if j == 0:
                            A(f"v_pk_mul_f32 v[{a+2*h}:{a+2*h+1}], v[{KU+2*h}:{KU+2*h+1}], v[{c+2*h}:{c+2*h+1}]")
                        else:
                            A(f"v_pk_fma_f32 v[{a+2*h}:{a+2*h+1}], v[{KU+2*h}:{KU+2*h+1}], v[{c+2*h}:{c+2*h+1}], v[{a+2*h}:{a+2*h+1}]")
                e = r - 3
                if e >= 0:
                    unpack(VU, V + 2 * e)
                    a = AC + 4 * e
                    for h in range(2):
                        A(f"v_pk_mul_f32 v[{a+2*h}:{a+2*h+1}], v[{a+2*h}:{a+2*h+1}], v[{VU+2*h}:{VU+2*h+1}]")
            A("s_waitcnt lgkmcnt(0)")
            A(f"v_xor_b32 v6, v{AD+2}, v7")
            A(f"v_lshl_add_u32 v6, v6, 4, v{AD+3}")
            A(f"v_subrev_u32 v{AD+2}, 4, v{AD+2}")
            for dd in range(4):
                for m in range(4):
                    A(f"v_cvt_pk_bf16_f32 v{O+dd*4+m}, v{AC+4*(7-2*m)+dd}, v{AC+4*(6-2*m)+dd}")
                A(f"ds_write_b128 v6, v[{O+dd*4}:{O+dd*4+3}] offset:{dd*2048}")
            return c_

        def mix(comp, groups):
            out = []
            n = len(groups)
            step = len(comp) / (n + 1.0)
            k = 0
            for idx, x in enumerate(comp):
                while k < n and idx >= k * step:
                    out += groups[k]; k += 1
                out.append(x)
            while k < n:
                out += groups[k]; k += 1
            return out
        o += flat(loads(0))
        o += pw() + px()
        for dd in range(4):
            for tap in range(4):
                src = SH + 2 * dd + (tap >> 1)
                if tap & 1:
                    A(f"v_and_b32 v{C+tap*4+dd}, 0xffff0000, v{src}")
                else:
                    A(f"v_lshlrev_b32 v{C+tap*4+dd}, 16, v{src}")
        head = o
        last = [I(f"s_mov_b32 s{S_PX}, {OOB}"), I(f"s_cmp_eq_u32 s{S_CNT}, 1"), I(f"s_cselect_b32 s{T3}, {OOB}, 0"),
                I(f"v_or_b32 v{AD}, s{T3}, v{AD}")]
        body = mix(compute(0), [pw()] + loads(1) + [pw()]) + mix(compute(1), [px() + last] + loads(0))
        o = []
        o += self.stamp(40)
        o += self.g2_setup(VT).flat()
        for b in range(2):
            o += flat(self.wd_dma(b))
        o += srd(SP, P_WS, WS_UR_SIZE, WS_UR)
        A(f"s_lshl2_add_u32 s{T2}, s{T1}, s{S_WAVE}")
        A(f"s_lshl_b32 s{T2}, s{T2}, 16")
        A(f"s_xor_b32 s{T0}, s{T0}, 1")
        A(f"s_lshl_b32 s{T0}, s{T0}, 11")
        A(f"s_add_u32 s{T2}, s{T2}, s{T0}")
        A(f"s_and_b32 s{T0}, s{S_WAVE}, 1")
        A(f"s_lshl_b32 s{T0}, s{T0}, 2")
        A(f"s_lshl_b32 s{T3}, s{S_WAVE}, 15")
        for q in range(4):
            A(f"s_add_u32 s{T1}, s{T0}, {q}")
            A(f"v_xor_b32 v{AD+q}, s{T1}, v{L}")
            A(f"v_lshlrev_b32 v{AD+q}, 4, v{AD+q}")
            A(f"v_add_u32 v{AD+q}, s{T3}, v{AD+q}")
        o.append(WAITDS())
        A("s_barrier")
        for i in range(16):
            for hf in range(2):
                r = 16 + (i * 2 + hf) * 4
                A(f"ds_read_b128 v[{r}:{r+3}], v{AD + (i >> 2)} offset:{i*2048 + hf*1024}")
        for i in range(16):
            for hf in range(2):
                r = 16 + (i * 2 + hf) * 4
                A(f"buffer_store_dwordx4 v[{r}:{r+3}], v{VL16}, s[{SP}:{SP+3}], s{T2} offen offset:{hf*1024} {self.stm}", tag="urst")
            A(f"s_add_u32 s{T2}, s{T2}, 4096")
        A("s_barrier")
        o += self.conv_hk_setup(VT + 4).flat()
        A(f"v_mov_b32 v{VT}, 0")
        o += self.poll_issue(VT, VT + 2)
        self.slot_over = {2: 2, 3: 3, 4: 2, 5: 3}
        o += flat(self.wd_dma(2)) + flat(self.wd_dma(3))
        o += self.poll_check("nch", VT, VT + 2, tagread=True)
        o += self.switch_flags(VT + 2).flat()
        o.append(WAITTAG("urst"))
        o += flat(self.flag_store("u", VT))
        o += self.stamp(42)
        o += self.conv_hk(VT + 4).flat()
        for b in range(4):
            o += flat(self.wd_reads(b))
        o += flat(self.wd_dma(4, 3)) + flat(self.wd_dma(5)) + flat(self.wd_dma(6)) + flat(self.wd_dma(7))
        o += self.ur_poll_addr(VT).flat()
        o += self.poll_issue(VT, VT + 2)
        o += flat(self.wd_reads(4)) + flat(self.wd_reads(5))
        o += flat(self.wd_dma(8, 5)) + flat(self.wd_dma(9))
        self.slot_over = {}
        o += self.poll_check("urh", VT, VT + 2)
        o += self.conv_ur_loads().flat()
        o += srd(SC, P_WS, WS_H_SIZE, WS_H)
        A("s_waitcnt vmcnt(0) lgkmcnt(0)")
        o += self.stamp(41)
        A("s_branch L_join")
        tail = o
        head, _ = fix_m0(head); tail, _ = fix_m0(tail)
        st = State(); st.vm.append(({("v", 236)}, "pf")); st.smem.append({("s", n) for n in range(4, 30)} | {("s", 98), ("s", 99), ("s", 100), ("s", 101)})
        head, st = insert_waits(head, st)
        b1, st1 = insert_waits([Ins(x.text, x.tag) for x in body], st.copy())
        b2, st2 = insert_waits([Ins(x.text, x.tag) for x in body], st1.copy())
        b3, st3 = insert_waits([Ins(x.text, x.tag) for x in body], st2.copy())
        assert text_of(b2) == text_of(b3)
        body = merge_waits(b1, b2)
        tail, _ = insert_waits(tail, st2)
        seq = head + [I(f"s_mov_b32 s{S_CNT}, 4"), I("L_hloop:")] + body + \
            [I(f"s_sub_u32 s{S_CNT}, s{S_CNT}, 1"), I(f"s_cmp_lg_u32 s{S_CNT}, 0"), I("s_cbranch_scc1 L_hloop")] + tail
        seq, _ = pad_hazards(seq)
        return seq

    def hf(self, n, i, ks):
        return (96 if (n & 1) == 0 else 32) + (i * 2 + ks) * 4

    def acc2(self, i, j):
        if i < 2:
            b = (i * 4 + j) * 4
            return f"v[{b}:{b+3}]"
        b = ((i - 2) * 4 + j) * 4
        return f"a[{b}:{b+3}]"

    def h_load(self, n, i, ks):
        m = i >> 1
        b = self.hf(n, i, ks)
        sreg = S_H0 + ks
        g = []
        if (i & 1) == 0:
            g.append(I(f"s_add_u32 s{sreg}, s{S_PO+m}, {(2*n+ks)*8192}"))
        g.append(I(f"buffer_load_dwordx4 v[{b}:{b+3}], v{VL16}, s[{SC}:{SC+3}], s{sreg} offen offset:{(i&1)*1024} {self.ldm}", tag=("h", n)))
        return g

    EQ, EY, EG, VQ, VY, VG = 96, 112, 128, 132, 133, 134

    def epi_loads(self):
        s = Stream(); A = s.A
        L = VLANE
        VQ, VY, VG = self.VQ, self.VY, self.VG
        s.ext(srd(SW, P_OUT, 2048 * 2048))
        A(f"v_and_b32 v{VG}, 15, v{L}")
        A(f"v_bfe_u32 v{VY}, v{L}, 4, 1")
        A(f"v_lshrrev_b32 v135, 5, v{L}")
        A(f"v_lshl_add_u32 v135, v{VY}, 1, v135")
        A(f"v_lshlrev_b32 v{VQ}, 11, v{VG}")
        A(f"v_lshl_add_u32 v{VQ}, v135, 4, v{VQ}")
        A(f"v_lshlrev_b32 v{VY}, 15, v135")
        A(f"v_lshl_add_u32 v{VY}, v{VG}, 4, v{VY}")
        A(f"v_lshlrev_b32 v{VG}, 3, v{VG}")
        A(f"s_lshl2_add_u32 s{U0}, s{S_TH}, s{S_WAVE}")
        A(f"s_lshl_b32 s{U1}, s{U0}, 8")
        G = self.EG
        A(f"buffer_load_dwordx2 v[{G}:{G+1}], v{VG}, s[{SA}:{SA+3}], s{U1} offen {self.ldm}", tag="epi")
        A(f"buffer_load_dwordx2 v[{G+2}:{G+3}], v{VG}, s[{SA}:{SA+3}], s{U1} offen offset:128 {self.ldm}", tag="epi")
        A(f"s_lshl_b32 s{U2}, s{S_DB}, 18")
        A(f"s_add_u32 s{U1}, s{U1}, s{U2}")
        for jj in range(2):
            for hh in range(2):
                r = self.EY + (jj * 2 + hh) * 4
                s.G(f"s_add_u32 s{U2}, s{U1}, {(8*jj + hh)*16384}",
                    I(f"buffer_load_dwordx4 v[{r}:{r+3}], v{VY}, s[{SB}:{SB+3}], s{U2} offen {self.ldm}", tag="epi"))
        A(f"s_lshl_b32 s{U0}, s{U0}, 16")
        A(f"s_lshl_b32 s{U2}, s{S_DB}, 7")
        A(f"s_add_u32 s{U0}, s{U0}, s{U2}")
        A(f"s_add_u32 s{U1}, s{U0}, 32768")
        for ii in range(2):
            for jj in range(2):
                r = self.EQ + (ii * 2 + jj) * 4
                A(f"buffer_load_dwordx4 v[{r}:{r+3}], v{VQ}, s[{SX}:{SX+3}], s{U0+ii} offen offset:{jj*64}", tag="epi")
        return s

    def dstep(self, n):
        mf = []
        side = {}
        add = lambda g, l: side.setdefault(g, []).extend(l)
        for i in range(8):
            add(8 * i - 1, [WAITREG(self.hf(n, i, 1))])
            for j in range(4):
                for ks in range(2):
                    f, b = self.wreg(2 * n + ks)
                    b += 4 * j
                    h = self.hf(n, i, ks)
                    c = "0" if (n == 0 and ks == 0) else self.acc2(i, j)
                    mf.append(I(f"v_mfma_f32_16x16x32_bf16 {self.acc2(i, j)}, {f}[{b}:{b+3}], v[{h}:{h+3}], {c}"))
            if n + 2 < 14:
                add(8 * i + 7, self.h_load(n + 2, i, 0))
                add(min(8 * i + 11, 63), self.h_load(n + 2, i, 1))
        rds = {**{m + 1: [14 + m] for m in range(10)}, 11: [24, 25], 12: [26, 27]}.get(n, [])
        for q, blk in enumerate(rds):
            spread(side, self.wd_reads(blk), 2 + 24 * q, 24 + 24 * q)
            if blk + 4 < 28:
                spread(side, self.wd_dma(blk + 4, blk), 34, 62)
        if n == 1:
            add(40, [WAITTAG(["y2st", "gst"])])
            spread(side, self.flag_store("y", 228), 42, 50)
        if n == 10:
            s = Stream()
            s.A(f"s_lshr_b32 s{U0}, s{S_TH}, 2")
            s.A(f"s_lshl_b32 s{U1}, s{S_DB}, 6")
            s.A(f"s_add_u32 s{U0}, s{U0}, s{U1}")
            s.A(f"s_lshl2_add_u32 s{U1}, s{S_TH}, s{S_WAVE}")
            s.A(f"s_lshl_b32 s{U1}, s{U1}, 4")
            s.A(f"v_and_b32 v224, 15, v{VLANE}")
            s.A(f"v_lshl_add_u32 v226, v224, 2, s{U0}")
            s.A(f"v_add_u32 v227, s{U1}, v224")
            s.A(f"v_bfe_u32 v225, v{VLANE}, 4, 1")
            s.G(f"v_cmp_eq_u32 vcc, 1, v225", f"v_cndmask_b32 v226, v226, v227, vcc")
            s.A(f"v_lshlrev_b32 v224, 9, v226")
            s.A(f"v_add_u32 v224, 256, v224")
            spread(side, s.g, 30, 60)
        if n == 11:
            add(50, self.poll_issue(224, 226))
        if n == 12:
            add(60, self.poll_check("y2", 224, 226))
        if n == 13:
            spread(side, self.epi_loads().g, 0, 40)
        return interleave(mf, side)

    def final(self):
        o = []
        A = lambda t, tag=None: o.append(I(t, tag))
        V_ = 224
        A(f"v_add_u32 v{V_}, s{S_LA}, v{VL16}")
        A(f"v_subrev_u32 v{V_+4}, {L_B}, v{V_}")
        offs = {1: (V_, L_A - L_B), 2: (V_, 0), 3: (V_ + 4, 0)}
        for m in range(1, 4):
            va, off = offs[m]
            for ii in range(2):
                for j in range(4):
                    A(f"ds_write_b128 v{va}, {self.acc2(2*m+ii, j)} offset:{off + (ii*4 + j)*1024}")
        GA, U, G = 32, 136, self.EG
        for ii in range(2):
            for jj in range(2):
                q = self.EQ + (ii * 2 + jj) * 4
                d = GA + (ii * 2 + jj) * 8
                for e in range(4):
                    y = self.EY + (jj * 2 + (e >> 1)) * 4 + ii * 2 + (e & 1)
                    A(f"v_lshlrev_b32 v{d+2*e}, 16, v{q+e}")
                    A(f"v_and_b32 v{d+2*e+1}, 0xffff0000, v{q+e}")
                    A(f"v_lshlrev_b32 v{U+2*e}, 16, v{y}")
                    A(f"v_and_b32 v{U+2*e+1}, 0xffff0000, v{y}")
                for e in range(4):
                    A(f"v_pk_mul_f32 v[{d+2*e}:{d+2*e+1}], v[{d+2*e}:{d+2*e+1}], v[{U+2*e}:{U+2*e+1}]")
                for e in range(4):
                    A(f"v_pk_mul_f32 v[{d+2*e}:{d+2*e+1}], v[{d+2*e}:{d+2*e+1}], v[{G+2*ii}:{G+2*ii+1}] op_sel_hi:[1,0]")
        base = {1: L_A, 2: L_B, 3: 0}
        for m in range(1, 4):
            A(f"s_sub_u32 s{U2}, s{S_WAVE}, {m}")
            A(f"s_and_b32 s{U2}, s{U2}, 3")
            A(f"s_lshl_b32 s{U2}, s{U2}, 13")
            if base[m]:
                A(f"s_add_u32 s{U2}, s{U2}, {base[m]}")
            A(f"v_add_u32 v{V_+m}, s{U2}, v{VL16}")
        o.append(WAITDS())
        A("s_barrier")
        rbs = (64, 160, 192)
        for m in range(1, 4):
            rb = rbs[m - 1]
            for r in range(8):
                A(f"ds_read_b128 v[{rb+4*r}:{rb+4*r+3}], v{V_+m} offset:{r*1024}")
        for m in range(1, 4):
            rb = rbs[m - 1]
            for r in range(16):
                A(f"v_pk_add_f32 v[{2*r}:{2*r+1}], v[{2*r}:{2*r+1}], v[{rb+2*r}:{rb+2*r+1}]")
        for ii in range(2):
            for jj in range(2):
                x = (ii * 4 + 2 * jj) * 4
                for r in range(4):
                    A(f"v_permlane16_swap_b32 v{x+r}, v{x+4+r}")
        for ii in range(2):
            for jj in range(2):
                x = (ii * 4 + 2 * jj) * 4
                d = GA + (ii * 2 + jj) * 8
                for e in range(4):
                    A(f"v_pk_fma_f32 v[{x+2*e}:{x+2*e+1}], v[{x+2*e}:{x+2*e+1}], v[{G+2*ii}:{G+2*ii+1}], v[{d+2*e}:{d+2*e+1}] op_sel:[0,1,0] op_sel_hi:[1,1,1]")
                ob = U + (ii * 2 + jj) * 4
                for e in range(4):
                    A(f"v_cvt_pk_bf16_f32 v{ob+e}, v{x+2*e}, v{x+2*e+1}")
                A(f"buffer_store_dwordx4 v[{ob}:{ob+3}], v{self.VQ}, s[{SW}:{SW+3}], s{U0+ii} offen offset:{jj*64}")
        return o

    def conv_phase(self):
        gl, gs = self.g_streams()
        o = self.conv_prep()
        o += [WAITTAG("hk"), WAITDS()]
        o += self.conv_reads(0)
        o += self.stamp()
        hl = [self.h_load(0, i, ks) for i in range(8) for ks in range(2)] + [self.h_load(1, i, ks) for i in (6, 7) for ks in range(2)]
        for r in range(8):
            mf = self.conv_mfmas(r)
            n = len(mf)
            side = {}
            add = lambda g, l: side.setdefault(g, []).extend(l)
            if r < 7:
                rd = self.conv_reads(r + 1)
                for k, x in enumerate(rd):
                    add(2 + (k * (n - 6)) // len(rd), [x])
            if r == self.hflag_r:
                add(0, [WAITTAG("hst")])
                spread(side, self.flag_store("h", 228), 1, 5)
            blk = 6 + r
            spread(side, self.wd_reads(blk), 4, 20)
            spread(side, self.wd_dma(blk + 4, blk), 22, n - 1)
            if r == 1:
                spread(side, gl.g, 5, n - 1, cap=3)
            if r == 0:
                s = Stream()
                s.A(f"s_lshr_b32 s{U0}, s{S_TH}, 1")
                s.A(f"s_lshr_b32 s{U1}, s{U0}, 2")
                s.A(f"s_and_b32 s{U0}, s{U0}, 3")
                s.A(f"s_lshl3_add_u32 s{U0}, s{U0}, s{U1}")
                s.A(f"s_lshl1_add_u32 s{U0}, s{S_WAVE}, s{U0}")
                s.A(f"s_and_b32 s{U1}, s{S_TH}, 1")
                s.A(f"s_lshl_b32 s{U1}, s{U1}, 1")
                s.A(f"s_lshl2_add_u32 s{U0}, s{U0}, s{U1}")
                s.A(f"s_lshl_b32 s{U0}, s{U0}, 9")
                s.A(f"v_and_b32 v225, 7, v{VLANE}")
                s.A(f"v_min_u32 v225, 6, v225")
                s.A(f"v_bfe_u32 v226, v{VLANE}, 3, 1")
                s.A(f"v_lshl_add_u32 v225, v225, 7, v226")
                s.A(f"v_lshlrev_b32 v225, 9, v225")
                s.A(f"v_add_u32 v225, s{U0}, v225")
                spread(side, s.g, 4, n - 2, cap=3)
            if r in (3, 4):
                half = len(gs.g) // 2
                spread(side, gs.g[:half] if r == 3 else gs.g[half:], 0, n - 1, cap=3)
            if r == self.hchk - 1:
                add(n - 10, self.poll_issue(225, 226))
            if r == self.hchk:
                add(4, self.poll_check("h", 225, 226))
                k = len(hl) if r == 7 else len(hl) // 2
                spread(side, hl[:k], 5, n, cap=3); hl = hl[k:]
            elif r > self.hchk:
                spread(side, hl, 0, n, cap=3); hl = []
            o += interleave(mf, side)
        o += self.stamp()
        pre = []
        if self.hchk >= 8:
            pre = self.poll_issue(225, 226) + self.poll_check("h", 225, 226) + flat(hl)
        o += pre + [x for i in range(4, 6) for ks in range(2) for x in self.h_load(1, i, ks)]
        o += self.conv_out()
        o += [x for i in range(0, 4) for ks in range(2) for x in self.h_load(1, i, ks)]
        return o

    def prof_out(self):
        if not self.prof:
            return []
        o = self.stamp() + self.rstamp(63)
        o += srd(SA, P_WS, 1 << 20, WS_PROF)
        o.append(I(f"s_lshl2_add_u32 s{T0}, s2, s{S_WAVE}"))
        o.append(I(f"s_lshl_b32 s{T0}, s{T0}, 8"))
        o.append(I(f"v_lshlrev_b32 v0, 2, v{VLANE}"))
        o.append(I(f"buffer_store_dword v{VPROF}, v0, s[{SA}:{SA+3}], s{T0} offen"))
        return o

    def build(self):
        seq = self.common_start() + self.g1_start()
        for s in self.g1_steps():
            seq += s
        seq += self.stamp()
        seq += self.g1_epilogue()
        seq.append(I("L_join:"))
        self.join_stamp = self.nst
        seq += self.stamp()
        seq += self.conv_phase()
        seq += self.stamp()
        for n in range(14):
            seq += self.dstep(n)
            if self.prof and self.o.get("fine") and n % 2 == 1 and n < 13:
                seq += self.stamp()
        seq += self.stamp()
        seq += self.final()
        if self.prof:
            seq += self.stamp()
            seq.append(I("s_waitcnt vmcnt(0)"))
        seq += self.prof_out()
        seq, _ = fix_m0(seq)
        seq, st = insert_waits(seq)
        seq, npad = pad_hazards(seq)
        hs = self.helper()
        self.npad = npad
        self.ninstr = len(seq) + len(hs)
        body = text_of(seq) + "\n    s_endpgm\n" + text_of(hs) + "\n" + text_of(self.slow) + "\nL_done:\n    s_endpgm\n"
        return "\n".join(kernel_header(NAME)) + "\n" + body

    def file(self):
        hdr = "".join(open("gated_mix__ssm_conv_h3__swiglu_ffn__prompt.s.ref").readlines()[:15])
        out = [hdr.rstrip("\n"), f"; @launch grid=(256,1,1) block=(256,1,1) lds={LDS}",
               '.amdgcn_target "amdgcn-amd-amdhsa--gfx950"', ".text", self.build(),
               '.section .rodata,"a"', ".p2align 6", kernel_desc(NAME, 512, 102, 256)]
        return "\n".join(out) + "\n"


if __name__ == "__main__":
    f = Fused(prof=("prof" in sys.argv))
    t = f.file()
    open("fused.s", "w").write(t)
    print("instrs", f.ninstr, "pads", f.npad, "stamps", f.nst)
```

```python
import re

REG_RE = re.compile(r"(?<![\w.])([vas])(?:(\d+)|\[(\d+):(\d+)\])(?![\w])")

TRANS = ("v_exp_f32", "v_log_f32", "v_rcp_f32", "v_rsq_f32", "v_sqrt_f32", "v_sin_f32", "v_cos_f32")


def regs_of(op):
    out = []
    for m in REG_RE.finditer(op):
        f = m.group(1)
        if m.group(2) is not None:
            out.append((f, int(m.group(2))))
        else:
            out.extend((f, i) for i in range(int(m.group(3)), int(m.group(4)) + 1))
    for sp in ("vcc", "exec", "m0"):
        if re.search(r"(?<![\w])" + sp + r"(_lo|_hi)?(?![\w])", op):
            out.append((sp, 0))
    return out


def split_ops(s):
    ops, depth, cur = [], 0, ""
    for ch in s:
        if ch == "[" or ch == "(":
            depth += 1
        elif ch == "]" or ch == ")":
            depth -= 1
        if ch == "," and depth == 0:
            ops.append(cur.strip()); cur = ""
        else:
            cur += ch
    if cur.strip():
        ops.append(cur.strip())
    return ops


class Ins:
    __slots__ = ("text", "op", "kind", "rd", "wr", "tag", "srcc", "sab", "pseudo", "arg")

    def __init__(self, text, tag=None):
        self.text = text
        self.tag = tag
        self.pseudo = None
        self.arg = None
        self.srcc = []
        self.sab = []
        t = text.split(";")[0].strip()
        if not t or t.endswith(":") or t.startswith("."):
            self.op = ""; self.kind = "label" if t.endswith(":") else "none"; self.rd = []; self.wr = []
            return
        parts = t.split(None, 1)
        op = parts[0]
        op = re.sub(r"_(e32|e64|sdwa|dpp)$", "", op)
        self.op = op
        rest = parts[1] if len(parts) > 1 else ""
        ops = split_ops(rest)
        rd, wr = [], []
        k = None
        if op.startswith("v_mfma"):
            k = "mfma"
            wr = regs_of(ops[0]); self.sab = regs_of(ops[1]) + regs_of(ops[2]); self.srcc = regs_of(ops[3])
            rd = self.sab + self.srcc
        elif op.startswith("ds_read") or op.startswith("ds_bpermute") or op.startswith("ds_permute") or op.startswith("ds_swizzle"):
            k = "ds"; wr = regs_of(ops[0]); rd = [r for o in ops[1:] for r in regs_of(o)]
        elif op.startswith("ds_"):
            k = "ds"; rd = [r for o in ops for r in regs_of(o)]
        elif op.startswith("buffer_load") or op.startswith("global_load"):
            if re.search(r"\blds\b", rest) or op.startswith("global_load_lds"):
                k = "dma"; rd = [r for o in ops for r in regs_of(o)] + [("m0", 0)]
            else:
                k = "vload"; wr = regs_of(ops[0]); rd = [r for o in ops[1:] for r in regs_of(o)]
        elif op.startswith("buffer_store") or op.startswith("global_store"):
            k = "vstore"; rd = [r for o in ops for r in regs_of(o)]
        elif op.startswith("buffer_atomic") or op.startswith("global_atomic"):
            k = "vstore"; rd = [r for o in ops for r in regs_of(o)]
            if re.search(r"\bsc0\b", rest):
                k = "vload"; wr = regs_of(ops[0])
        elif op in ("buffer_inv", "buffer_wbl2"):
            k = "vstore"
        elif op.startswith("s_load") or op.startswith("s_buffer_load") or op in ("s_memtime", "s_memrealtime"):
            k = "smem"; wr = regs_of(ops[0]); rd = [r for o in ops[1:] for r in regs_of(o)]
        elif op == "s_waitcnt":
            k = "wait"
        elif op == "s_barrier":
            k = "barrier"
        elif op == "s_nop":
            k = "nop"
        elif op.startswith("s_cbranch") or op in ("s_branch", "s_endpgm", "s_setpc_b64"):
            k = "branch"; rd = [r for o in ops for r in regs_of(o)]
        elif op.startswith("s_cmp") or op.startswith("s_bitcmp"):
            k = "salu"; rd = [r for o in ops for r in regs_of(o)]
        elif op in ("s_setprio", "s_sleep", "s_sendmsg"):
            k = "salu"
        elif op.startswith("s_"):
            k = "salu"; wr = regs_of(ops[0]); rd = [r for o in ops[1:] for r in regs_of(o)]
            if "saveexec" in op:
                wr = wr + [("exec", 0)]; rd = rd + [("exec", 0)]
            if op in ("s_addk_i32", "s_mulk_i32"):
                rd = rd + wr
        elif op.startswith("v_"):
            k = "valu"
            if op.startswith("v_cmpx"):
                wr = regs_of(ops[0]) + [("exec", 0)]; rd = [r for o in ops[1:] for r in regs_of(o)]
            elif op in ("v_swap_b32",) or op.startswith("v_permlane16_swap") or op.startswith("v_permlane32_swap"):
                wr = regs_of(ops[0]) + regs_of(ops[1]); rd = list(wr)
            elif re.match(r"v_(add|sub|subrev|addc|subb|subbrev)_co_u32", op) or op.startswith("v_div_scale") or op.startswith("v_mad_u64"):
                wr = regs_of(ops[0]) + regs_of(ops[1]); rd = [r for o in ops[2:] for r in regs_of(o)]
            else:
                wr = regs_of(ops[0]); rd = [r for o in ops[1:] for r in regs_of(o)]
                if op.startswith("v_fmac") or op.startswith("v_pk_fmac") or op.startswith("v_dot2c") or op.startswith("v_mac") or op == "v_writelane_b32":
                    rd = rd + wr
                if op == "v_cndmask_b32" and len(ops) == 3:
                    rd = rd + [("vcc", 0)]
                if "UNUSED_PRESERVE" in rest or "row_" in rest or "quad_perm" in rest:
                    rd = rd + wr
        else:
            raise ValueError("cannot classify: " + text)
        self.kind = k
        self.rd = rd
        self.wr = wr

    def states(self):
        if self.kind in ("label", "none"):
            return 0
        if self.kind == "nop":
            return int(self.text.split()[1], 0) + 1
        return 1


def I(text, tag=None):
    return Ins(text, tag)


def WAITTAG(tag):
    i = Ins("s_waitcnt vmcnt(0)")
    i.pseudo = "waittag"; i.arg = tag
    return i


def WAITDS(tag=None):
    i = Ins("s_waitcnt lgkmcnt(0)")
    i.pseudo = "waitds"; i.arg = tag
    return i


def WAITREG(v, f="v"):
    i = Ins("s_waitcnt vmcnt(0)")
    i.pseudo = "waitreg"; i.arg = (f, v)
    return i


def merge_waits(a, b):
    def split(seq):
        out = []; cur = (None, None)
        for x in seq:
            if x.kind == "wait":
                v, l = parse_wait(x.text)
                cur = (v if cur[0] is None else (cur[0] if v is None else min(v, cur[0])),
                       l if cur[1] is None else (cur[1] if l is None else min(l, cur[1])))
            else:
                out.append((cur, x)); cur = (None, None)
        return out
    A, B = split(a), split(b)
    assert [x.text for _, x in A] == [x.text for _, x in B]
    out = []
    mn = lambda p, q: q if p is None else (p if q is None else min(p, q))
    for (wa, x), (wb, _) in zip(A, B):
        v, l = mn(wa[0], wb[0]), mn(wa[1], wb[1])
        if v is not None or l is not None:
            out.append(Ins("s_waitcnt" + (f" vmcnt({v})" if v is not None else "") + (f" lgkmcnt({l})" if l is not None else "")))
        out.append(x)
    return out


class State:
    def __init__(self):
        self.vm = []
        self.ds = []
        self.smem = []

    def copy(self):
        s = State(); s.vm = list(self.vm); s.ds = list(self.ds); s.smem = list(self.smem)
        return s


def parse_wait(text):
    vm = re.search(r"vmcnt\((\d+)\)", text)
    lg = re.search(r"lgkmcnt\((\d+)\)", text)
    return (int(vm.group(1)) if vm else None, int(lg.group(1)) if lg else None)


def insert_waits(seq, st=None):
    st = st or State()
    out = []

    def emit_wait(vm, lg):
        if vm is not None and vm >= len(st.vm):
            vm = None
        if lg is not None and not st.smem and lg >= len(st.ds):
            lg = None
        if vm is None and lg is None:
            return
        if vm is not None:
            vm = min(vm, 62)
        if lg is not None:
            lg = min(lg, 14)
            if st.smem:
                lg = 0
        if out and out[-1].kind == "wait" and out[-1].pseudo == "auto":
            pv, pl = parse_wait(out[-1].text)
            out.pop()
            if pv is not None:
                vm = pv if vm is None else min(vm, pv)
            if pl is not None:
                lg = pl if lg is None else min(lg, pl)
        t = "s_waitcnt" + (f" vmcnt({vm})" if vm is not None else "") + (f" lgkmcnt({lg})" if lg is not None else "")
        w = Ins(t); w.pseudo = "auto"
        out.append(w)
        apply_wait(vm, lg)

    def apply_wait(vm, lg):
        if vm is not None and len(st.vm) > vm:
            st.vm = st.vm[len(st.vm) - vm:] if vm > 0 else []
        if lg is not None:
            if lg == 0:
                st.ds = []; st.smem = []
            elif len(st.ds) > lg:
                st.ds = st.ds[len(st.ds) - lg:]

    for ins in seq:
        if ins.pseudo == "waittag":
            idx = [n for n, (w, tg) in enumerate(st.vm) if (tg in ins.arg if isinstance(ins.arg, (list, set, frozenset)) else tg == ins.arg)]
            if idx:
                emit_wait(len(st.vm) - 1 - max(idx), None)
            continue
        if ins.pseudo == "waitreg":
            idx = [n for n, (w, tg) in enumerate(st.vm) if ins.arg in w]
            if idx:
                emit_wait(len(st.vm) - 1 - max(idx), None)
            continue
        if ins.pseudo == "waitds":
            if ins.arg is None:
                if st.ds or st.smem:
                    emit_wait(None, 0)
            else:
                idx = [n for n, (w, tg) in enumerate(st.ds) if tg == ins.arg]
                if idx:
                    emit_wait(None, len(st.ds) - 1 - max(idx))
            continue
        if ins.kind == "wait":
            vm, lg = parse_wait(ins.text)
            apply_wait(vm, lg)
            out.append(ins)
            continue
        touched = set(ins.rd) | set(ins.wr)
        vm = lg = None
        if touched:
            for n, (w, tg) in enumerate(st.vm):
                if w & touched:
                    vm = len(st.vm) - 1 - n
            for n, (w, tg) in enumerate(st.ds):
                if w & touched:
                    lg = len(st.ds) - 1 - n
            for w in st.smem:
                if w & touched:
                    lg = 0
        if vm is not None or lg is not None:
            emit_wait(vm, lg)
        if ins.kind in ("vload", "vstore", "dma") and len(st.vm) >= 63:
            emit_wait(62, None)
        out.append(ins)
        if ins.pseudo == "nocount":
            continue
        if ins.kind in ("vload", "vstore", "dma"):
            st.vm.append((set(ins.wr), ins.tag))
        elif ins.kind == "ds":
            st.ds.append((set(ins.wr), ins.tag))
        elif ins.kind == "smem":
            st.smem.append(set(ins.wr))
    return out, st


def mfma_passes(op):
    if "32x32x16" in op or "32x32x8" in op:
        return 8
    if "16x16x32" in op or "16x16x16" in op:
        return 4
    raise ValueError(op)


def need_states(p, c):
    n = 0
    pw, cr, cw = set(p.wr), set(c.rd), set(c.wr)
    isv = lambda r: r[0] in ("v", "a")
    if p.kind == "mfma":
        ps = mfma_passes(p.op)
        d = pw
        if c.kind == "mfma":
            if d & set(c.sab):
                n = max(n, {4: 8, 8: 12}[ps])
            if d & set(c.srcc):
                if not (set(c.srcc) == d and mfma_passes(c.op) == ps):
                    n = max(n, {4: 6, 8: 10}[ps])
            elif d & cw:
                n = max(n, {4: 6, 8: 10}[ps])
        elif c.kind in ("valu", "ds", "vload", "vstore", "dma"):
            if d & (cr | cw):
                n = max(n, {4: 8, 8: 12}[ps])
        if c.kind == "valu" and set(p.srcc) & cw:
            n = max(n, {4: 3, 8: 7}[ps])
    if p.kind == "valu":
        vw = {r for r in pw if isv(r)}
        sw = {r for r in pw if r[0] in ("s", "vcc")}
        if c.kind == "mfma" and vw & cr:
            n = max(n, 2)
        if c.kind == "mfma" and ("exec", 0) in pw:
            n = max(n, 4)
        if c.kind in ("vload", "vstore", "dma") and sw & cr:
            n = max(n, 5)
        if c.kind == "valu":
            if sw & cr:
                n = max(n, 4 if c.op in ("v_readlane_b32", "v_writelane_b32") else 2)
            if c.op in ("v_readlane_b32", "v_readfirstlane_b32") and vw & cr:
                n = max(n, 1)
            if c.op.startswith("v_permlane") and vw & cr:
                n = max(n, 2)
            if ("row_" in c.text or "quad_perm" in c.text or "wave_" in c.text) and vw & cr:
                n = max(n, 2)
            if p.op in TRANS and c.op not in TRANS and vw & cr:
                n = max(n, 1)
            if ("sdwa" in p.text or "dst_sel" in p.text or "op_sel" in p.text) and not p.op.startswith("v_pk_") and vw & (cr | cw):
                n = max(n, 1)
            if ("exec", 0) in pw and (c.op in ("v_readlane_b32", "v_readfirstlane_b32", "v_writelane_b32") or c.op.startswith("v_permlane")):
                n = max(n, 4)
            if ("exec", 0) in pw and ("row_" in c.text or "quad_perm" in c.text):
                n = max(n, 5)
        if c.kind == "salu" and sw & cr:
            n = max(n, 1)
    if p.kind == "salu" and ("m0", 0) in pw and c.kind == "dma":
        n = max(n, 1)
    if p.kind == "vstore" and re.search(r"x[34]\b", p.op):
        data = set(regs_of(split_ops(p.text.split(None, 1)[1])[0 if p.op.startswith("buffer") else 1]))
        if data & cw:
            n = max(n, 2 if c.kind == "valu" else 1)
    return n


def pad_hazards(seq, lookback=24, verbose=False, pre=None):
    hist = list(pre or [])
    out = []
    npad = 0
    for c in seq:
        if c.kind in ("label", "none"):
            out.append(c); hist.append(c); continue
        need = 0
        dist = 0
        for p in reversed(hist[-lookback * 2:]):
            if dist >= 20:
                break
            if p.kind not in ("label", "none", "wait", "nop", "barrier"):
                n = need_states(p, c)
                if n > dist:
                    need = max(need, n - dist)
            dist += p.states()
        if need > 0:
            npad += need
            while need > 0:
                k = min(need, 16)
                nop = Ins(f"s_nop {k - 1}")
                out.append(nop); hist.append(nop)
                need -= k
            if verbose:
                print("pad before:", c.text)
        out.append(c); hist.append(c)
    return out, npad


def text_of(seq):
    return "\n".join(("" if i.kind == "label" else "    ") + i.text for i in seq)


def interleave(mfmas, side):
    out = list(side.get(-1, []))
    for n, m in enumerate(mfmas):
        out.append(m)
        out.extend(side.get(n, []))
    return out


def kernel_header(name):
    return [f".globl {name}", ".p2align 8", f".type {name},@function", f"{name}:"]


def kernel_desc(name, vgpr=512, sgpr=102, accum=256):
    return "\n".join([
        f".amdhsa_kernel {name}",
        f"  .amdhsa_next_free_vgpr {vgpr}",
        f"  .amdhsa_next_free_sgpr {sgpr}",
        f"  .amdhsa_accum_offset {accum}",
        "  .amdhsa_group_segment_fixed_size 0",
        "  .amdhsa_kernarg_size 112",
        "  .amdhsa_user_sgpr_count 2",
        "  .amdhsa_user_sgpr_kernarg_segment_ptr 1",
        "  .amdhsa_system_sgpr_workgroup_id_x 1",
        "  .amdhsa_float_denorm_mode_32 3",
        "  .amdhsa_float_denorm_mode_16_64 3",
        ".end_amdhsa_kernel"])


def _kl(x):
    if x.kind in ("wait", "barrier"):
        return "w"
    if x.kind == "nop":
        return "n"
    return {"ds": "l", "dma": "m", "vload": "m", "vstore": "m", "valu": "v"}.get(x.kind, "s")


def gap_cost(l):
    l = [x for x in l if x.kind not in ("label", "none")]
    k = [_kl(x) for x in l]
    n = sum(x.states() for x in l) + sum(1 for x in l if x.op in TRANS)
    c = 4 * max(0, n - 2) if set(k) - {"s"} else 4 * max(0, n - 3)
    c += 4 * max(0, k.count("l") - 1) + 4 * max(0, k.count("m") - 1) + 0.9 * max(0, k.count("v") - 1)
    for a, b in zip(l, l[1:]):
        if ("m0", 0) in a.wr and b.kind == "dma":
            c += 4
    return c


SCC_READERS = ("s_cselect", "s_cbranch", "s_addc", "s_subb", "s_cmov")


def hoist_salu(seq, maxup=8):
    gaps = [[]]
    mf = []
    for x in seq:
        if x.kind == "mfma":
            mf.append(x); gaps.append([])
        else:
            gaps[-1].append(x)

    def movable(g, i):
        x = g[i]
        if x.kind != "salu" or x.op.startswith("s_cmp") or x.op.startswith("s_bitcmp") or x.op.startswith(SCC_READERS) or x.op in ("s_setprio", "s_sleep", "s_getpc_b64"):
            return False
        if i + 1 < len(g) and g[i + 1].op.startswith(SCC_READERS):
            return False
        return True

    def indep(x, y):
        if y.kind in ("label", "branch"):
            return False
        w, r = set(x.wr), set(x.rd)
        return not (w & (set(y.rd) | set(y.wr))) and not (r & set(y.wr))

    for gi in range(2, len(gaps) - 1):
        g = gaps[gi]
        if len(g) > 12:
            continue
        changed = True
        while changed and gap_cost(g) > 0:
            changed = False
            for i in range(len(g)):
                if not movable(g, i) or not all(indep(g[i], y) for y in g[:i]):
                    continue
                x = g[i]
                gain = gap_cost(g) - gap_cost(g[:i] + g[i + 1:])
                if gain <= 0:
                    continue
                for up in range(1, maxup + 1):
                    t = gi - up
                    if t < 1 or len(gaps[t]) > 12:
                        break
                    if gap_cost(gaps[t] + [x]) - gap_cost(gaps[t]) < gain and not (gaps[t] and gaps[t][-1].op.startswith("s_cmp")):
                        gaps[t].append(x); del g[i]; changed = True
                        break
                    if not all(indep(x, y) for y in gaps[t]):
                        break
                if changed:
                    break
    out = []
    for gi, g in enumerate(gaps):
        out += g
        if gi < len(mf):
            out.append(mf[gi])
    return out
```

```python
import sys
sys.path.insert(0, "work")
from asmlib import *
from gemm1 import srd, fix_m0

NAME = "gated_mix__ssm_conv_h3__swiglu_ffn__prompt_kernel"

WS_H, WS_H_SIZE = 0, 16 * 28 * 32768
WS_UR, WS_UR_SIZE = 16 << 20, 4 << 20
WS_G, WS_G_SIZE = 20 << 20, 2048 * 8
WS_Y2, WS_Y2_SIZE = 21 << 20, 4 << 20
WS_FLAG, WS_FLAG_SIZE = 26 << 20, 1024 * 1024
WS_PROF = 32 << 20
WS_X, WS_X_SIZE = 40 << 20, 1024 * 8192
P_Q, P_K, P_V, P_SH, P_SK, P_SD, P_WG, P_WU, P_WD, P_GW, P_OUT, P_DBG, P_WS = 4, 6, 8, 10, 12, 14, 16, 18, 20, 22, 24, 26, 28
S_WAVE, S_DV = 30, 31
SX, SW, SP, SD, SA, SB, SC, SF = 32, 36, 40, 44, 48, 52, 56, 60
S_XK, S_WK, S_XD, S_WD, S_PK, S_PD, S_CNT, S_TT, S_FT = 64, 65, 66, 67, 68, 69, 70, 71, 72
T0, T1, T2, T3 = 73, 74, 75, 76
S_WB, S_W0, S_LA, S_TH, S_DB = 77, 78, 79, 80, 81
S_KQ, S_G0, S_HB, S_HD, S_H0 = 82, 83, 84, 85, 90
S_NC = 86
S_PX = 88
S_CU = 89
U0, U1, U2 = 92, 93, 94
S_CL = 95
S_HK = 96
S_STMP = 98
S_C = 100
VX, VW, VXR, VWR, VPU, VPD, VPX = 208, 216, 224, 226, 234, 235, 207
VLANE, VL16, VWD, VDR, VF, VPROF = 244, 245, 246, 250, 254, 255
VT = 192
L_W, L_A, L_B, LDS = 65536, 131072, 98304, 163840
L_H = (0, 32768, 65536)
CSTR = 4160
NCOPY = 2
CW = NCOPY * CSTR + 4576
L_C, CHW = 65536, 8288
L_U, CUW = 98688, 4576
OOB = "0x80000000"
WSLAB = 64 * 7168


class Stream:
    def __init__(self):
        self.g = []

    def A(self, t, tag=None):
        self.g.append([I(t, tag)])

    def G(self, *ts):
        self.g.append([t if isinstance(t, Ins) else I(t) for t in ts])

    def ext(self, l):
        for x in l:
            self.g.append(x if isinstance(x, list) else [x])

    def flat(self):
        return [i for g in self.g for i in g]


def flat(groups):
    return [i for g in groups for i in g]


def cost(l):
    return sum(0.5 if x.pseudo in ("waittag", "waitds", "waitreg") else (2 if x.op in TRANS else 1) for x in l)


def klass(x):
    if x.pseudo in ("waittag", "waitds", "waitreg"):
        return "w"
    return {"ds": "l", "dma": "m", "vload": "m", "vstore": "m", "valu": "v"}.get(x.kind, "s")


def gapcost(l):
    k = [klass(x) for x in l]
    n = sum(0.5 if c == "w" else 1 for c in k) + sum(1 for x in l if x.op in TRANS)
    c = 0.0
    if set(k) - {"s", "w"}:
        c += 4 * max(0, n - 2)
    else:
        c += 4 * max(0, n - 3)
    c += 4 * max(0, k.count("l") - 1) + 4 * max(0, k.count("m") - 1) + 0.9 * max(0, k.count("v") - 1)
    return c


def spread(side, groups, g0, g1, cap=2):
    n = len(groups)
    if n == 0:
        return
    g = g0
    for k, grp in enumerate(groups):
        ideal = g0 + (k * (g1 - g0)) // n
        lo = max(g, min(ideal - 2, g1 - 1))
        hi = max(lo + 1, min(g1, g0 + ((k + 1) * (g1 - g0)) // n + 3))
        best = min(range(lo, hi), key=lambda x: (round(gapcost(side.get(x, []) + grp) - gapcost(side.get(x, [])), 1), abs(x - ideal)))
        side.setdefault(best, []).extend(grp)
        g = best


class Fused:
    def __init__(self, prof=False, hchk=4, hflag_r=1, stm="sc1", ldm="sc1", opts=None):
        self.prof = prof
        self.stm, self.ldm = stm, ldm
        self.hchk, self.hflag_r = hchk, hflag_r
        self.slow = []
        self.nst = 0
        self.npf = 0
        self.slot_over = {}
        self.w0t = 0
        self.pend_dma = []
        self.o = opts or {}
        self.nk = self.o.get("nk", "nt")
        self.plan_wd()
        self.seq = [(n, i) for n in range(11) for i in range(8)] + [(n, i) for n in (11, 12, 13) for i in (2, 3, 6, 7)] + \
            [(n, i) for n in (11, 12, 13) for i in (0, 1, 4, 5)]

    def stamp(self, n=None):
        if not self.prof:
            return []
        if n is None:
            n = self.nst
            self.nst += 1
        op = "s_memrealtime" if self.o.get("rt") else "s_memtime"
        return [I(f"{op} s[{S_STMP}:{S_STMP+1}]"), I("s_waitcnt lgkmcnt(0)"), I(f"v_writelane_b32 v{VPROF}, s{S_STMP}, {n}")]

    def rstamp(self, lane):
        if not self.prof:
            return []
        return [I(f"s_memrealtime s[{S_STMP}:{S_STMP+1}]"), I("s_waitcnt lgkmcnt(0)"), I(f"v_writelane_b32 v{VPROF}, s{S_STMP}, {lane}")]

    def flag_store(self, kind, vtmp):
        off = {"h1": 0, "h2": 128, "u": 256, "y": 384, "x": 512, "g": 640}[kind]
        return [[I(f"v_mov_b32 v{vtmp}, s{S_NC}")], [I(f"v_mov_b32 v{vtmp+1}, s{S_NC+1}")],
                [I(f"buffer_store_dwordx2 v[{vtmp}:{vtmp+1}], v{VF}, s[{SF}:{SF+3}], 0 offen offset:{off} sc1", tag="flag")]]

    def poll_issue(self, vaddr, vdata):
        return [I(f"buffer_load_dwordx2 v[{vdata}:{vdata+1}], v{vaddr}, s[{SF}:{SF+3}], 0 offen sc1", tag="poll")]

    def poll_check_n(self, name, vaddr, vdata, nl):
        cmp_ = f"v_cmp_eq_u64 vcc, s[{S_NC}:{S_NC+1}], v[{vdata}:{vdata+1}]"
        m = (1 << nl) - 1
        tst = [I(cmp_), I("s_nop 1"), I(f"s_and_b32 s3, vcc_lo, {m}"), I(f"s_cmp_eq_u32 s3, {m}")]
        self.slow += [I(f"L_slow_{name}:"), I(f"s_mov_b32 s{S_CNT}, 0x100000"), I(f"L_spin_{name}:"), I(f"s_sleep {self.o.get('sleep', 2)}"),
                      I(f"buffer_load_dwordx2 v[{vdata}:{vdata+1}], v{vaddr}, s[{SF}:{SF+3}], 0 offen sc1"),
                      I(f"s_sub_u32 s{S_CNT}, s{S_CNT}, 1"), I(f"s_cbranch_scc1 L_ok_{name}"),
                      I("s_waitcnt vmcnt(0)")] + [I(x.text) for x in tst] + \
                     [I(f"s_cbranch_scc0 L_spin_{name}"), I(f"s_branch L_ok_{name}")]
        return tst + [I(f"s_cbranch_scc0 L_slow_{name}"), I(f"L_ok_{name}:")]

    def poll_check(self, name, vaddr, vdata, tagread=False):
        cmp_ = f"v_cmp_ne_u64 vcc, 0, v[{vdata}:{vdata+1}]" if tagread else f"v_cmp_eq_u64 vcc, s[{S_NC}:{S_NC+1}], v[{vdata}:{vdata+1}]"
        self.slow += [I(f"L_slow_{name}:"), I("s_mov_b32 s3, 0x100000"), I(f"L_spin_{name}:"), I(f"s_sleep {self.o.get('sleep', 2)}"),
                      I(f"buffer_load_dwordx2 v[{vdata}:{vdata+1}], v{vaddr}, s[{SF}:{SF+3}], 0 offen sc1"),
                      I("s_sub_u32 s3, s3, 1"), I(f"s_cbranch_scc1 L_ok_{name}"),
                      I("s_waitcnt vmcnt(0)"), I(cmp_), I("s_nop 1"), I("s_cmp_eq_u64 vcc, -1"),
                      I(f"s_cbranch_scc0 L_spin_{name}"), I(f"s_branch L_ok_{name}")]
        return [I(cmp_), I("s_nop 1"), I("s_cmp_eq_u64 vcc, -1"), I(f"s_cbranch_scc0 L_slow_{name}"), I(f"L_ok_{name}:")]

    def switch_flags(self, vdata):
        s = Stream(); A = s.A
        A(f"v_readfirstlane_b32 s{S_NC}, v{vdata}")
        A(f"v_readfirstlane_b32 s{S_NC+1}, v{vdata+1}")
        s.ext([srd(SF, P_WS, WS_FLAG_SIZE, WS_FLAG)])
        A(f"s_lshl2_add_u32 s{T2}, s2, s{S_WAVE}")
        A(f"s_lshl_b32 s{T2}, s{T2}, 10")
        A(f"v_lshrrev_b32 v{VF}, 4, v{VLANE}")
        A(f"v_min_u32 v{VF}, 1, v{VF}")
        A(f"v_lshlrev_b32 v{VF}, 31, v{VF}")
        A(f"v_lshl_add_u32 v{VF}, v{VLANE}, 3, v{VF}")
        A(f"v_add_u32 v{VF}, s{T2}, v{VF}")
        return s

    def ur_poll_addr(self, v):
        s = Stream(); A = s.A
        A(f"s_lshr_b32 s{T2}, s2, 4")
        A(f"s_lshl3_add_u32 s{T2}, s{T2}, {224*4}")
        A(f"s_bfe_u32 s{T3}, s2, 0x20002")
        A(f"s_add_u32 s{T2}, s{T2}, s{T3}")
        A(f"s_lshl_b32 s{T2}, s{T2}, 10")
        A(f"s_add_u32 s{T2}, s{T2}, 256")
        A(f"v_and_b32 v{v}, 1, v{VLANE}")
        A(f"v_lshlrev_b32 v{v}, 12, v{v}")
        A(f"v_add_u32 v{v}, s{T2}, v{v}")
        return s

    def acc1(self, i, jp):
        if jp < 12:
            return "v", (jp * 4 + i) * 4
        return "a", 96 + ((jp - 12) * 4 + i) * 4

    def xf(self, buf, i, ks):
        b = buf * 32 + (i * 2 + ks) * 4
        return f"a[{b}:{b+3}]"

    def x_dma(self, step, mm):
        mod = self.o.get("n0", "") if step < self.o.get("n0steps", 0) else ""
        i = I(f"buffer_load_dwordx4 v{VX+mm}, s[{SX}:{SX+3}], s{S_XK} offen offset:{(mm&3)*1024} {mod} lds", tag=("x", step))
        i.arg = (S_XD, (mm >> 2) * 4096, ("x", step))
        o = [i]
        if mm == 7:
            o += [I(f"s_add_u32 s{S_XK}, s{S_XK}, 128"), I(f"s_xor_b32 s{S_XD}, s{S_XD}, 8192")]
        return o

    def w_dma(self, step, mm):
        mod = self.o.get("n0", "") if step < self.o.get("n0steps", 0) else ""
        i = I(f"buffer_load_dwordx4 v{VW+mm}, s[{SW}:{SW+3}], s{S_WK} offen offset:{(mm&3)*1024} {mod} lds", tag=("w", step))
        i.arg = (S_WD, (mm >> 2) * 4096, ("w", step))
        o = [i]
        if mm == 7:
            o += [I(f"s_add_u32 s{S_WK}, s{S_WK}, {WSLAB}"), I(f"s_xor_b32 s{S_WD}, s{S_WD}, 32768")]
        return o

    def w_reads(self, step, jp):
        slot = jp % 4
        o = []
        for ks in range(2):
            for hf in range(2):
                b = 64 + slot * 8 + ks * 4 + 2 * hf
                off = (step & 1) * 32768 + (jp & 1) * 16384 + ks * 8192 + hf * 1024
                o.append(I(f"ds_read_b64_tr_b16 a[{b}:{b+1}], v{VWR + (jp >> 1)} offset:{off}", tag=("wr", step, jp)))
        return o

    def x_reads(self, step):
        o = []
        for i in range(4):
            for ks in range(2):
                o.append(I(f"ds_read_b128 {self.xf(step & 1, i, ks)}, v{VXR+ks} offset:{(step&1)*8192 + i*2048}", tag=("xr", step)))
        return o

    def dummy(self):
        self.npf += 1
        return 236 + self.npf % 8

    def pf_u(self):
        return [I(f"buffer_load_dword v{self.dummy()}, v{VPU}, s[{SP}:{SP+3}], s{S_PK} offen", tag="pf"),
                I(f"s_add_u32 s{S_PK}, s{S_PK}, {WSLAB}")]

    def pf_x(self):
        return [I(f"buffer_load_dword v{self.dummy()}, v{VPX}, s[{SX}:{SX+3}], s{S_PX} offen", tag="pf"),
                I(f"s_add_u32 s{S_PX}, s{S_PX}, 128")]

    def pf_d(self, n=None):
        if n is None:
            return [I(f"buffer_load_dword v{self.dummy()}, v{VPD}, s[{SD}:{SD+3}], s{S_PD} offen", tag="pf"),
                    I(f"s_add_u32 s{S_PD}, s{S_PD}, {224*2048}")]
        k = self.o.get("pdl", 4)
        per = 16 // k
        inc = k * 128 if (n % per) < per - 1 else 224 * 2048 - (per - 1) * k * 128
        return [I(f"buffer_load_dword v{self.dummy()}, v{VPD}, s[{SD}:{SD+3}], s{S_PD} offen", tag="pf"),
                I(f"s_add_u32 s{S_PD}, s{S_PD}, {inc}")]

    def common_start(self):
        o = []
        A = lambda t, tag=None: o.append(I(t, tag))
        A("s_cmp_ge_u32 s2, 256")
        A("s_cbranch_scc1 L_done")
        if self.o.get("scramble"):
            A("s_bfe_u32 s3, s2, 0x30003")
            A("s_xor_b32 s2, s2, s3")
        A("s_load_dwordx2 s[4:5], s[0:1], 0")
        A("s_load_dwordx8 s[16:23], s[0:1], 56")
        A("s_load_dwordx4 s[24:27], s[0:1], 88")
        A("s_load_dwordx2 s[28:29], s[0:1], 104")
        A("s_load_dwordx2 s[6:7], s[0:1], 8")
        A("s_load_dwordx8 s[8:15], s[0:1], 16")
        A("s_getpc_b64 s[96:97]")
        A("L_pc:")
        A("v_min_u32 v1, 31, v0")
        A("v_lshlrev_b32 v1, 7, v1")
        A("global_load_dword v236, v1, s[96:97]", tag="pf")
        if self.prof:
            A(f"v_mov_b32 v{VPROF}, 0")
            A(f"s_memtime s[{S_STMP}:{S_STMP+1}]"); A(f"s_memrealtime s[{S_C}:{S_C+1}]")
            self.nst = 1
        A("v_lshrrev_b32 v1, 6, v0")
        A(f"v_and_b32 v{VLANE}, 63, v0")
        A(f"v_readfirstlane_b32 s{S_WAVE}, v1")
        A("s_cmp_ge_u32 s2, 224")
        A("s_cbranch_scc1 L_helper")
        return o

    def after_karg(self):
        o = []
        A = lambda t, tag=None: o.append(I(t, tag))
        A("s_waitcnt lgkmcnt(0)")
        if self.prof:
            A(f"v_writelane_b32 v{VPROF}, s{S_STMP}, 0"); A(f"v_writelane_b32 v{VPROF}, s{S_C}, 62")
        return o

    def misc_setup(self):
        o = []
        A = lambda t, tag=None: o.append(I(t, tag))
        A(f"s_lshl2_add_u32 s{T0}, s2, s{S_WAVE}")
        A(f"s_lshl_b32 s{T2}, s{T0}, 12")
        A(f"s_load_dword s{S_HK}, s[{P_SK}:{P_SK+1}], s{T2}")
        A(f"s_lshr_b32 s{T2}, s{T0}, 1")
        A(f"s_lshl_b32 s{T2}, s{T2}, 2")
        A(f"s_load_dword s{S_DV}, s[{P_SD}:{P_SD+1}], s{T2}")
        A(f"v_lshlrev_b32 v{VL16}, 4, v{VLANE}")
        o += srd(SF, P_DBG, 256)
        return o

    def g1_start(self):
        o = []
        A = lambda t, tag=None: o.append(I(t, tag))
        L = VLANE
        A(f"s_lshr_b32 s{T1}, s2, 3")
        A(f"s_and_b32 s{S_TT}, s{T1}, 3")
        A(f"s_and_b32 s{T2}, s2, 1")
        A(f"s_lshl2_add_u32 s{S_TT}, s{T2}, s{S_TT}")
        A(f"s_lshr_b32 s{S_FT}, s{T1}, 2")
        A(f"s_bfe_u32 s{T2}, s2, 0x20001")
        A(f"s_mul_i32 s{T2}, s{T2}, 7")
        A(f"s_add_u32 s{S_FT}, s{S_FT}, s{T2}")
        A(f"s_lshl2_add_u32 s{T0}, s{S_TT}, s{S_WAVE}")
        A(f"s_lshl_b32 s{T0}, s{T0}, 17")
        A(f"v_lshrrev_b32 v3, 3, v{L}")
        A("v_lshlrev_b32 v3, 11, v3")
        A(f"v_add_u32 v3, s{T0}, v3")
        A(f"v_and_b32 v4, 7, v{L}")
        A(f"v_lshrrev_b32 v5, 4, v{L}")
        A("v_xor_b32 v4, v4, v5")
        A("v_xor_b32 v6, 4, v4")
        A(f"v_lshl_add_u32 v{VX}, v4, 4, v3")
        A("v_lshl_add_u32 v6, v6, 4, v3")
        for mm in range(1, 8):
            A(f"v_add_u32 v{VX+mm}, {mm*16384 - (mm&3)*1024}, v{VX if mm % 2 == 0 else 6}")
        A(f"s_lshl_b32 s{S_XD}, s{S_WAVE}, 14")
        A(f"s_mov_b32 s{S_XK}, 0")
        A(f"s_mov_b32 s{S_WK}, 0")
        A(f"s_and_b32 s{T0}, s{S_WAVE}, 1")
        A(f"s_mul_i32 s{T0}, s{T0}, {32*7168}")
        A(f"s_lshl_b32 s{T3}, s{S_FT}, 8")
        A(f"s_add_u32 s{T0}, s{T0}, s{T3}")
        A(f"v_and_b32 v3, 15, v{L}")
        A("v_lshlrev_b32 v4, 1, v5")
        A("v_xor_b32 v3, v3, v4")
        A("v_mul_u32_u24 v4, 7168, v5")
        A(f"v_add_u32 v4, s{T0}, v4")
        A("v_xor_b32 v6, 8, v3")
        A(f"v_lshl_add_u32 v{VW}, v3, 4, v4")
        A("v_lshl_add_u32 v6, v6, 4, v4")
        for mm in range(1, 8):
            A(f"v_add_u32 v{VW+mm}, {mm*4*7168 - (mm&3)*1024}, v{VW if (mm >> 1) % 2 == 0 else 6}")
        A(f"s_lshl_b32 s{S_WD}, s{S_WAVE}, 13")
        A(f"s_add_u32 s{S_WD}, s{S_WD}, {L_W}")
        o += self.after_karg()
        o += self.stamp()
        o += srd(SX, P_Q, 2048 * 2048)
        A(f"s_cmp_ge_u32 s{S_WAVE}, 2")
        A(f"s_cselect_b32 s{SW}, s{P_WU}, s{P_WG}")
        A(f"s_cselect_b32 s{SW+1}, s{P_WU+1}, s{P_WG+1}")
        A(f"s_and_b32 s{SW+1}, s{SW+1}, 0xffff")
        A(f"s_mov_b32 s{SW+2}, {1024*7168}")
        A(f"s_mov_b32 s{SW+3}, 0x20000")
        for mm in range(8):
            o += self.x_dma(0, mm)
        for mm in range(8):
            o += self.w_dma(0, mm)
        o += self.stamp()
        ninit = self.o.get("ninit", 3)
        o += srd(SP, P_WU, 1024 * 7168)
        A(f"s_lshl2_add_u32 s{T0}, s2, s{S_WAVE}")
        A(f"s_lshl_b32 s{T0}, s{T0}, 9")
        A(f"s_add_u32 s{S_PK}, s{T0}, {WSLAB}")
        A(f"v_and_b32 v3, 3, v{L}")
        A("v_lshlrev_b32 v3, 7, v3")
        A(f"v_lshrrev_b32 v4, 2, v{L}")
        A(f"s_mov_b32 s{T2}, {WSLAB}")
        A(f"v_mul_lo_u32 v5, v4, s{T2}")
        A("v_add_u32 v5, v5, v3")
        A(f"v_cmp_le_u32 vcc, {ninit}, v4")
        A(f"v_mov_b32 v6, {OOB}")
        A("v_cndmask_b32 v5, v5, v6, vcc")
        A(f"buffer_load_dword v{self.dummy()}, v5, s[{SP}:{SP+3}], s{S_PK} offen", tag="pf")
        A(f"s_add_u32 s{S_PK}, s{S_PK}, {ninit*WSLAB}")
        A("v_min_u32 v4, 1, v4")
        A(f"v_lshl_add_u32 v{VPU}, v4, 31, v3")
        if self.o.get("xg1", True):
            A(f"s_mul_i32 s{T0}, s2, 9363")
            A(f"s_lshr_b32 s{T0}, s{T0}, 10")
            A(f"s_mul_i32 s{T2}, s{S_WAVE}, 3")
            A(f"s_add_u32 s{T0}, s{T0}, s{T2}")
            A(f"s_lshl_b32 s{T0}, s{T0}, 11")
            A(f"s_add_u32 s{S_PX}, s{T0}, 128")
            A("v_lshlrev_b32 v5, 4, v3")
            A(f"v_cmp_eq_u32 vcc, 6144, v5")
            A("v_cndmask_b32 v5, v5, v6, vcc")
            A(f"v_lshrrev_b32 v4, 2, v{L}")
            A("v_lshl_add_u32 v7, v4, 7, v5")
            A(f"v_cmp_le_u32 vcc, {ninit+1}, v4")
            A("v_cndmask_b32 v7, v7, v6, vcc")
            A(f"buffer_load_dword v{self.dummy()}, v7, s[{SX}:{SX+3}], s{S_PX} offen", tag="pf")
            A(f"s_add_u32 s{S_PX}, s{S_PX}, {(ninit+1)*128}")
            A("v_cmp_le_u32 vcc, 1, v4")
            A(f"v_cndmask_b32 v{VPX}, v5, v6, vcc")
        A(f"s_lshl2_add_u32 s{T0}, s{T1}, s{S_WAVE}")
        A(f"s_lshl_b32 s{T0}, s{T0}, 9")
        A(f"s_add_u32 s{T0}, s{T0}, 4096")
        A(f"v_add_u32 v3, s{T0}, v3")
        A("v_min_u32 v3, L_done-L_pc2, v3")
        A("s_getpc_b64 s[98:99]")
        A("L_pc2:")
        A(f"global_load_dword v{self.dummy()}, v3, s[98:99]", tag="pf")
        o += self.misc_setup()
        A(f"v_and_b32 v3, 15, v{L}")
        A(f"v_lshrrev_b32 v4, 4, v{L}")
        A("v_lshrrev_b32 v5, 1, v3")
        A("v_xor_b32 v4, v4, v5")
        A("v_lshlrev_b32 v4, 4, v4")
        A("v_lshl_add_u32 v4, v3, 7, v4")
        A(f"s_lshl_b32 s{T0}, s{S_WAVE}, 14")
        A(f"v_add_u32 v{VXR}, s{T0}, v4")
        A(f"v_xor_b32 v{VXR+1}, 64, v{VXR}")
        A(f"v_lshrrev_b32 v3, 4, v{L}")
        A(f"v_bfe_u32 v4, v{L}, 2, 2")
        A("v_lshl_add_u32 v5, v3, 3, v4")
        A("v_and_b32 v3, 1, v3")
        A("v_lshl_add_u32 v4, v3, 2, v4")
        A(f"v_and_b32 v3, 3, v{L}")
        A("v_lshlrev_b32 v3, 3, v3")
        A("v_lshl_add_u32 v3, v5, 8, v3")
        A(f"v_add_u32 v3, {L_W}, v3")
        for j in range(8):
            A(f"v_xor_b32 v5, {j}, v4")
            A(f"v_lshl_add_u32 v{VWR+j}, v5, 5, v3")
        o += self.stamp()
        o.append(WAITTAG([("x", 0), ("w", 0)]))
        A("s_barrier")
        o += self.stamp()
        o += self.w_reads(0, 0)
        o += self.x_reads(0)
        o += self.w_reads(0, 1)
        return o

    def wreg(self, blk):
        m = blk % 14
        if m < 6:
            return "a", 160 + 16 * m
        if m < 10:
            return "a", 96 + 16 * (m - 6)
        return "v", 160 + 16 * (m - 10)

    def wslot(self, blk):
        s = self.slot_over.get(blk, self.slot_map[blk])
        return (L_A - L_B + 4096 * s) if s < 2 else 4096 * (s - 2)

    def plan_wd(self):
        kc = self.o.get("kc", 8)
        self.kc = kc
        sm = {b: b & 1 for b in range(8 + kc)}
        prev = {b: b - 2 for b in range(2, 8 + kc)}
        nb = 8 + kc
        sm[nb] = 2
        sm[nb + 1] = 3
        for b in range(nb + 2, 28):
            sm[b] = sm[b - 4]; prev[b] = b - 4
        self.slot_map, self.prev, self.b0_blk, self.b1_blk = sm, prev, nb, nb + 1
        p0 = 6 + kc
        rem = list(range(p0, 28))
        plan = {}
        dd = {}
        for k, b in enumerate(rem):
            d = int(k * 11.0 / len(rem))
            if b >= 14:
                d = max(d, ((b - 14) >> 1) + 1)
            if b == p0 + 1:
                d = max(d, 1)
            if b == nb:
                d = max(d, 2)
            if b == nb + 1:
                d = max(d, 4)
            if prev.get(b) in dd:
                d = max(d, dd[prev[b]] + 2)
            d = min(d, (b >> 1) - 1, 10 if b < 26 else 11)
            assert prev.get(b) not in dd or d > dd[prev[b]], (b, d)
            dd[b] = d
            plan.setdefault(d, []).append(b)
        self.rd2 = plan
        if kc == 8:
            self.rd2 = self.o.get("rd2", {1: [14], 2: [15], 3: [16], 4: [17], 5: [18, 19], 6: [20], 7: [21], 8: [22, 23], 9: [24], 10: [25, 26], 11: [27]})

    def g2_setup(self, vt):
        s = Stream(); A = s.A
        L = VLANE
        A(f"s_bfe_u32 s{S_TH}, s2, 0x30003")
        A(f"s_bfe_u32 s{U2}, s2, 0x10001")
        A(f"s_lshl3_add_u32 s{S_TH}, s{U2}, s{S_TH}")
        A(f"s_lshr_b32 s{S_DB}, s2, 6")
        A(f"s_bfe_u32 s{U2}, s2, 0x10002")
        A(f"s_lshl2_add_u32 s{S_DB}, s{U2}, s{S_DB}")
        A(f"s_lshr_b32 s{U2}, s{S_WAVE}, 1")
        A(f"s_lshl1_add_u32 s{S_DB}, s{S_DB}, s{U2}")
        A(f"s_and_b32 s{U0}, s2, 1")
        A(f"s_and_b32 s{U1}, s{S_WAVE}, 1")
        A(f"s_lshl1_add_u32 s{S_KQ}, s{U0}, s{U1}")
        s.ext(srd(SD, P_WD, 3584 * 2048))
        A(f"s_lshl2_add_u32 s{U0}, s{S_TH}, s{S_KQ}")
        A(f"s_mul_i32 s{S_HB}, s{U0}, {7*32768}")
        A(f"s_lshl_b32 s{U0}, s{U2}, 13")
        A(f"s_add_u32 s{S_HB}, s{S_HB}, s{U0}")
        A(f"s_lshl_b32 s{S_HD}, s{U1}, 14")
        A(f"s_add_u32 s{S_HD}, s{S_HD}, s{U0}")
        A(f"s_mul_i32 s{S_PD}, s{S_WAVE}, {896*2048}")
        A(f"s_lshl_b32 s{U0}, s2, 11")
        A(f"s_add_u32 s{S_PD}, s{S_PD}, s{U0}")
        A(f"s_mul_i32 s{S_WB}, s{S_KQ}, {896*2048}")
        A(f"s_lshl_b32 s{U0}, s{S_DB}, 7")
        A(f"s_add_u32 s{S_WB}, s{S_WB}, s{U0}")
        A(f"s_lshl_b32 s{S_LA}, s{S_WAVE}, 13")
        A(f"s_add_u32 s{S_LA}, s{S_LA}, {L_B}")
        A(f"v_lshrrev_b32 v{vt}, {self.o.get('pdl', 4).bit_length() - 1}, v{L}")
        A(f"v_min_u32 v{vt}, 1, v{vt}")
        A(f"v_lshlrev_b32 v{vt}, 31, v{vt}")
        A(f"v_lshl_add_u32 v{VPD}, v{L}, 7, v{vt}")
        A(f"v_lshrrev_b32 v{vt}, 3, v{L}")
        A(f"v_and_b32 v{vt+1}, 6, v{vt}")
        A(f"v_and_b32 v{vt+2}, 7, v{L}")
        A(f"v_xor_b32 v{vt+1}, v{vt+1}, v{vt+2}")
        A(f"v_lshlrev_b32 v{vt}, 11, v{vt}")
        A(f"v_lshl_add_u32 v{VWD}, v{vt+1}, 4, v{vt}")
        for m in range(1, 4):
            A(f"v_add_u32 v{VWD+m}, {m*(16384-1024)}, v{VWD}")
        A(f"v_lshrrev_b32 v{vt}, 2, v{L}")
        A(f"v_bfe_u32 v{vt+1}, v{L}, 3, 2")
        A(f"v_and_b32 v{vt+2}, 3, v{L}")
        A(f"v_lshlrev_b32 v{vt}, 7, v{vt}")
        A(f"v_lshl_add_u32 v{vt}, v{vt+2}, 3, v{vt}")
        A(f"v_add_u32 v{vt}, s{S_LA}, v{vt}")
        for j in range(4):
            A(f"v_xor_b32 v{vt+2}, {j}, v{vt+1}")
            A(f"v_lshl_add_u32 v{VDR+j}, v{vt+2}, 5, v{vt}")
        return s

    def wd_dma(self, blk, after=None):
        out = []
        self.w0t ^= 1
        sw = (S_W0, S_H0 + 1)[self.w0t]
        for m in range(4):
            g = []
            if m == 0:
                if after is not None:
                    g.append(WAITDS(("wdr", after)))
                g.append(I(f"s_add_u32 s{sw}, s{S_WB}, {(0 if self.o.get('wdfake') else blk)*32*2048}", tag=("wso", blk)))
            i = I(f"buffer_load_dwordx4 v{VWD+m}, s[{SD}:{SD+3}], s{sw} offen offset:{m*1024} lds", tag=("wd", blk))
            i.arg = (S_LA, self.wslot(blk), ("wd", blk))
            g.append(i)
            out.append(g)
        return out

    def check_wd(self, seq):
        owner, dma, rd = {}, {}, {}
        for n, x in enumerate(seq):
            if isinstance(x.tag, tuple) and x.tag[0] == "wso":
                owner[x.wr[0]] = x.tag[1]
            if isinstance(x.tag, tuple) and x.tag[0] == "wd" and x.kind == "dma":
                so = [r for r in x.rd if r in owner]
                assert owner[so[-1]] == x.tag[1], ("offset register clobbered", x.tag)
                dma.setdefault(x.tag[1], []).append(n)
            if isinstance(x.tag, tuple) and x.tag[0] == "wdr":
                rd.setdefault(x.tag[1], []).append(n)
        for b in range(28):
            assert max(dma[b]) < min(rd[b]), b
            if b in self.prev:
                assert max(rd[self.prev[b]]) < min(dma[b]), b
            f, r0 = self.wreg(b)
            uses = [n for n, x in enumerate(seq) if x.kind == "mfma" and (f, r0) in x.sab[:4] and n > self.g2_pos]
            if b >= 14:
                assert uses[7] < min(rd[b]) and max(rd[b]) < uses[8], b
            else:
                assert max(rd[b]) < uses[0], b

    def wd_reads(self, blk):
        f, b0 = self.wreg(blk)
        out = [[WAITTAG(("wd", blk))]]
        for j in range(4):
            for hf in range(2):
                b = b0 + 4 * j + 2 * hf
                out.append([I(f"ds_read_b64_tr_b16 {f}[{b}:{b+1}], v{VDR+j} offset:{self.wslot(blk) + hf*2048}", tag=("wdr", blk))])
        return out

    CVA, CVG, CVT, CAD, CACC = 40, 33, 34, 44, 96

    def cFA(self, buf, q):
        return ("a", (1 - buf) * 64 + q * 4)

    def cFG(self, buf, e):
        return ("a", 32 + e * 4) if buf == 1 else ("v", 48 + e * 4)

    def conv_hk_setup(self, vt):
        s = Stream(); A = s.A
        s.ext(srd(SB, P_SK, 1024 * 4096))
        A(f"s_lshl2_add_u32 s{T0}, s2, s{S_WAVE}")
        A(f"s_mul_i32 s{S_CL}, s{S_WAVE}, {CHW}")
        A(f"s_add_u32 s{S_CL}, s{S_CL}, {L_C}")
        A(f"s_mul_i32 s{S_CU}, s{S_WAVE}, {CUW}")
        A(f"s_add_u32 s{S_CU}, s{S_CU}, {L_U}")
        A(f"s_lshl_b32 s{T1}, s{T0}, 12")
        A(f"v_lshrrev_b32 v{vt}, 5, v{VLANE}")
        A(f"v_lshlrev_b32 v{vt}, 31, v{vt}")
        A(f"v_lshl_add_u32 v{vt}, v{VLANE}, 7, v{vt}")
        A(f"buffer_load_dword v{self.dummy()}, v{vt}, s[{SB}:{SB+3}], s{T1} offen {self.nk}", tag="pf")
        return s

    def conv_hk(self, vt):
        s = Stream(); A = s.A
        for c in range(NCOPY):
            A(f"v_add_u32 v{vt}, {2*c}, v{VL16}")
            for m in range(4):
                i = I(f"buffer_load_dwordx4 v{vt}, s[{SB}:{SB+3}], s{T1} offen offset:{m*1024} lds", tag="hk")
                i.arg = (S_CL, c * CSTR + 32, "hk")
                s.G(i)
        return s

    def conv_ur_loads(self):
        s = Stream(); A = s.A
        s.ext([srd(SA, P_WS, WS_UR_SIZE, WS_UR)])
        for m in range(4):
            i = I(f"buffer_load_dwordx4 v{VL16}, s[{SA}:{SA+3}], s{T1} offen offset:{m*1024} {self.ldm} lds", tag="hk")
            i.arg = (S_CU, 0, "ur")
            s.G(i)
        return s

    def conv_prep(self):
        o = []
        A = lambda t, tag=None: o.append(I(t, tag))
        VT_, L = self.CVT, VLANE
        Z = 48
        for q in range(4):
            A(f"v_mov_b32 v{Z+q}, 0")
        A(f"v_min_u32 v{VT_+2}, 29, v{L}")
        A(f"v_lshlrev_b32 v{VT_+2}, 4, v{VT_+2}")
        A(f"v_add_u32 v{VT_+2}, s{S_CU}, v{VT_+2}")
        A(f"ds_write_b128 v{VT_+2}, v[{Z}:{Z+3}] offset:4096")
        A(f"v_and_b32 v{VT_+3}, 1, v{L}")
        A(f"v_mul_u32_u24 v{VT_+2}, {CSTR}, v{VT_+3}")
        A(f"v_add_u32 v{VT_+2}, s{S_CL}, v{VT_+2}")
        A(f"ds_write_b128 v{VT_+2}, v[{Z}:{Z+3}]")
        A(f"s_lshl_b32 s{T2}, s{S_HK}, 16")
        A(f"v_mul_lo_u32 v{Z+3}, v{VT_+3}, s{T2}")
        A(f"ds_write_b128 v{VT_+2}, v[{Z}:{Z+3}] offset:16")
        A(f"v_and_b32 v{VT_+2}, 15, v{L}")
        A(f"v_add_u32 v{VT_+3}, 1, v{VT_+2}")
        A(f"v_and_b32 v{VT_+4}, 1, v{VT_+3}")
        A(f"v_and_b32 v{VT_+3}, 30, v{VT_+3}")
        A(f"v_lshrrev_b32 v{VT_+5}, 4, v{L}")
        A(f"v_lshl_add_u32 v{VT_+3}, v{VT_+5}, 3, v{VT_+3}")
        A(f"v_mul_u32_u24 v{VT_+4}, {CSTR}, v{VT_+4}")
        A(f"v_lshl_add_u32 v{self.CVA}, v{VT_+3}, 1, v{VT_+4}")
        A(f"v_add_u32 v{self.CVA}, s{S_CL}, v{self.CVA}")
        for q in range(1, 4):
            A(f"v_add_u32 v{self.CVA+q}, {1024*q}, v{self.CVA}")
        A(f"v_lshlrev_b32 v{VT_+3}, 5, v{VT_+2}")
        A(f"v_sub_u32 v{VT_+3}, 480, v{VT_+3}")
        A(f"v_lshl_add_u32 v{VT_+3}, v{VT_+5}, 4, v{VT_+3}")
        A(f"v_add_u32 v{self.CVG}, s{S_CU}, v{VT_+3}")
        A(f"s_and_b32 s{T2}, s{T0}, 1")
        A(f"s_lshl_b32 s{T2}, s{T2}, 4")
        A(f"s_lshr_b32 s{T3}, s{S_DV}, s{T2}")
        A(f"s_and_b32 s{T3}, s{T3}, 0xffff")
        A(f"v_sub_u32 v{VT_+3}, 15, v{VT_+2}")
        A(f"v_lshlrev_b32 v{VT_+4}, 3, v{VT_+5}")
        A(f"v_sub_u32 v{VT_+3}, v{VT_+3}, v{VT_+4}")
        A(f"v_and_b32 v{VT_+4}, 1, v{VT_+3}")
        A(f"v_lshlrev_b32 v{VT_+4}, 4, v{VT_+4}")
        A(f"v_lshlrev_b32 v{VT_+4}, v{VT_+4}, s{T3}")
        A(f"v_ashrrev_i32 v{VT_+3}, 1, v{VT_+3}")
        for q in range(4):
            A(f"v_cmp_eq_u32 vcc, {q}, v{VT_+3}")
            A(f"v_cndmask_b32 v{self.CAD+q}, 0, v{VT_+4}, vcc")
        return o

    def conv_reads(self, r):
        buf = r & 1
        out = []
        for n in range(8):
            f, fa = self.cFA(buf, n)
            off = 128 * (n & 1) + 16 * r
            out.append(I(f"ds_read2_b32 {f}[{fa}:{fa+1}], v{self.CVA + (n >> 1)} offset0:{off} offset1:{off+1}", tag=("cr", r)))
            out.append(I(f"ds_read2_b32 {f}[{fa+2}:{fa+3}], v{self.CVA + (n >> 1)} offset0:{off+2} offset1:{off+3}", tag=("cr", r)))
            f, fg = self.cFG(buf, n)
            out.append(I(f"ds_read_b128 {f}[{fg}:{fg+3}], v{self.CVG} offset:{2*(1792 - 256*n + 32*r)}", tag=("cr", r)))
        return out

    def conv_mfmas(self, r):
        buf = r & 1
        mf = []
        for c in range(8):
            acc = f"v[{self.CACC+4*c}:{self.CACC+4*c+3}]"
            if r == 0:
                f, fg = self.cFG(buf, c)
                mf.append(I(f"v_mfma_f32_16x16x32_bf16 {acc}, v[{self.CAD}:{self.CAD+3}], {f}[{fg}:{fg+3}], 0"))
            for q in range(c + 1):
                f1, fa = self.cFA(buf, q); f2, fg = self.cFG(buf, c - q)
                mf.append(I(f"v_mfma_f32_16x16x32_bf16 {acc}, {f1}[{fa}:{fa+3}], {f2}[{fg}:{fg+3}], {acc}"))
        return mf

    def conv_out(self):
        s = Stream(); A = s.A
        V_, L = 128, VLANE
        s.ext([srd(SB, P_WS, WS_Y2_SIZE, WS_Y2)])
        A(f"v_and_b32 v{V_}, 15, v{L}")
        A(f"v_lshrrev_b32 v{V_+1}, 4, v{L}")
        A(f"v_lshlrev_b32 v{V_}, 5, v{V_}")
        A(f"v_lshl_add_u32 v{V_}, v{V_+1}, 3, v{V_}")
        out = []
        for c in range(8):
            a = self.CACC + 4 * c
            out.append([[I(f"v_cvt_pk_bf16_f32 v{a}, v{a}, v{a+1}")], [I(f"v_cvt_pk_bf16_f32 v{a+1}, v{a+2}, v{a+3}")],
                        [I(f"buffer_store_dwordx2 v[{a}:{a+1}], v{V_}, s[{SB}:{SB+3}], s{T1} offen offset:{c*512} {self.stm}", tag="y2st")]])
        return s, out

    def g_helper(self):
        o = []
        A = lambda t, tag=None: o.append(I(t, tag))
        GW, Q, Z, R = 8, 16, 144, 160
        L = VLANE
        o += srd(SA, P_GW, 2048)
        A(f"s_sub_u32 s{U0}, s2, 224")
        A(f"s_lshl2_add_u32 s{U0}, s{U0}, s{S_WAVE}")
        A(f"s_lshl_b32 s{U1}, s{U0}, 15")
        for n in range(2):
            A(f"buffer_load_dwordx4 v[{GW+4*n}:{GW+4*n+3}], v{VL16}, s[{SA}:{SA+3}], 0 offen offset:{n*1024}")
        for r in range(16):
            for n in range(2):
                A(f"buffer_load_dwordx4 v[{Q+8*r+4*n}:{Q+8*r+4*n+3}], v{VL16}, s[{SX}:{SX+3}], s{U1} offen offset:{(r&1)*2048 + n*1024}")
            if r & 1:
                A(f"s_add_u32 s{U1}, s{U1}, 4096")
        ld = o
        o = []
        o += srd(SA, P_WS, WS_G_SIZE, WS_G)
        for r in range(16):
            A(f"v_mov_b32 v{Z+r}, 0")
        for r0 in range(0, 16, 4):
            for n in range(8):
                for r in range(r0, r0 + 4):
                    A(f"v_dot2c_f32_bf16 v{Z+r}, v{Q+8*r+n}, v{GW+n}")
        A("s_nop 2")
        for sh in ("row_shr:1", "row_shr:2", "row_shr:4", "row_shr:8", "row_bcast:15 row_mask:0xa", "row_bcast:31 row_mask:0xc"):
            for r in range(16):
                bc = " bound_ctrl:0" if sh.startswith("row_shr") else ""
                A(f"v_add_f32_dpp v{Z+r}, v{Z+r}, v{Z+r} {sh}{bc}")
        A(f"v_mov_b32 v{R}, 0")
        for r in range(16):
            A(f"v_readlane_b32 s3, v{Z+r}, 63")
            A(f"v_writelane_b32 v{R}, s3, {r}")
        A(f"v_cvt_pk_bf16_f32 v{R}, v{R}, v{R}")
        A(f"v_lshlrev_b32 v{R}, 16, v{R}")
        A(f"v_mul_f32 v{R}, 0xbfb8aa3b, v{R}")
        A(f"v_exp_f32 v{R}, v{R}")
        A(f"v_add_f32 v{R}, 1.0, v{R}")
        A(f"v_rcp_f32 v{R}, v{R}")
        A(f"v_cvt_pk_bf16_f32 v{R}, v{R}, v{R}")
        A(f"v_lshlrev_b32 v{R}, 16, v{R}")
        A(f"v_sub_f32 v{R+1}, 1.0, v{R}")
        A(f"v_cvt_pk_bf16_f32 v{R+1}, v{R+1}, v{R+1}")
        A(f"v_lshlrev_b32 v{R+1}, 16, v{R+1}")
        A(f"v_lshrrev_b32 v{R+2}, 4, v{L}")
        A(f"v_min_u32 v{R+2}, 1, v{R+2}")
        A(f"v_lshlrev_b32 v{R+2}, 31, v{R+2}")
        A(f"v_lshl_add_u32 v{R+2}, v{L}, 3, v{R+2}")
        A(f"s_lshl_b32 s{U0}, s{U0}, 7")
        A(f"buffer_store_dwordx2 v[{R}:{R+1}], v{R+2}, s[{SA}:{SA+3}], s{U0} offen {self.stm}")
        return ld, o

    def g1_steps(self):
        steps = []
        wpos = self.o.get("wpos", [(0, 118), (0, 126), (1, 6), (1, 14), (1, 22), (1, 30), (1, 38), (1, 46)])
        xpos = self.o.get("xpos", [54, 62, 70, 78, 86, 94, 102, 110])
        pg = self.o.get("pfgap", 50)
        la = self.o.get("la", 2)
        ninit = self.o.get("ninit", 3)
        pfu_steps = self.o.get("pfu", [0, 1] + list(range(1, 16)))[:15 - ninit]
        pfd_steps = self.o.get("pfd", [1, 2, 2] + list(range(3, 16)))
        d0 = self.o.get("wd0", 6)
        dma_plan = {d0 + b: [b] for b in range(8)}
        rd_plan = {d0 + 2 + b: [b] for b in range(6)}
        if self.o.get("nowdpre"):
            dma_plan = {}; rd_plan = {}
        for i in range(16):
            mf = []
            side = {}
            add = lambda g, l: side.setdefault(g, []).extend(l)
            for jp in range(16):
                for ii in range(4):
                    for ks in range(2):
                        b = 64 + (jp % 4) * 8 + ks * 4
                        f, a = self.acc1(ii, jp)
                        c = "0" if (i == 0 and ks == 0) else f"{f}[{a}:{a+3}]"
                        mf.append(I(f"v_mfma_f32_16x16x32_bf16 {f}[{a}:{a+3}], a[{b}:{b+3}], {self.xf(i & 1, ii, ks)}, {c}"))
            last = i == 15
            for jp in range(16):
                if jp <= 11:
                    for n, r in enumerate(self.w_reads(i, jp + 2)):
                        add(8 * jp + n, [r])
                elif jp == 12:
                    for n, r in enumerate(self.w_reads(i, 14) + self.w_reads(i, 15)):
                        add(8 * jp + n, [r])
                elif jp >= 14 and not last:
                    for n, r in enumerate(self.w_reads(i + 1, jp - 14)):
                        add(8 * jp + 1 + n, [r])
            if not last:
                add(111, [WAITDS(), WAITTAG(("w", i + 1))])
                side[112] = [I("s_barrier")] + side.get(112, [])
                xr = self.x_reads(i + 1)
                if i == 0:
                    xg = [104, 105, 106, 107, 108, 109, 110, 110]
                else:
                    x0 = self.o.get("xrg", 1 if la == 3 else 8)
                    if la == 3 and i == 1:
                        x0 = 6
                    xg = [8 * (x0 + n // 2) + 4 + (n % 2) for n in range(8)]
                add(xg[0] - 1, [WAITTAG(("x", i + 1))])
                for n, r in enumerate(xr):
                    add(xg[n], [r])
            if i == 0:
                for mm in range(8):
                    add(4 + 2 * mm, self.x_dma(1, mm))
                for mm in range(8):
                    add(20 + 3 * mm, self.w_dma(1, mm))
                add(53, [WAITDS(("xr", 0))])
                for mm in range(8):
                    add(54 + 6 * mm, self.x_dma(2, mm))
                for mm, (so, g) in enumerate(wpos):
                    if so == 0:
                        add(g, self.w_dma(2, mm))
            elif i == 1 and la == 3:
                add(3, [WAITDS(("xr", 1))])
                k = 0
                for mm, (so, g) in enumerate(wpos):
                    if so == 1:
                        add(4 + 3 * k, self.w_dma(2, mm)); k += 1
                for mm in range(8):
                    add(24 + 3 * mm, self.x_dma(3, mm))
                add(83, [WAITDS(("xr", 2))])
                for mm in range(8):
                    add(84 + 3 * mm, self.x_dma(4, mm))
                for mm, (so, g) in enumerate(wpos):
                    if so == 0:
                        add(g, self.w_dma(3, mm))
            else:
                if i + la < 16:
                    add(xpos[0] - 1, [WAITDS(("xr", i + la - 2))])
                    for mm in range(8):
                        add(xpos[mm], self.x_dma(i + la, mm))
                for mm, (so, g) in enumerate(wpos):
                    st = i + 2 - so
                    if st < 16:
                        add(g, self.w_dma(st, mm))
            for n_, s in enumerate(pfu_steps):
                if s == i:
                    add(pg, self.pf_u())
                    if self.o.get("xg1", True) and n_ < len(pfu_steps) - 1:
                        add(pg, self.pf_x())
            for n_, s in enumerate(pfd_steps):
                if s == i:
                    add(pg + 1, self.pf_d(n_))
            for jp in range(16):
                add(8 * jp - 1, [WAITDS(("wr", i, jp))])
            if i == 1:
                spread(side, self.g2_setup(VT).g, 0, pg)
            for blk in rd_plan.get(i, []):
                spread(side, self.wd_reads(blk), 56, 84)
            for blk in dma_plan.get(i, []):
                spread(side, self.wd_dma(blk, blk - 2 if blk >= 2 else None), 88, 126)
            if i == 3:
                add(8, [I(f"v_mov_b32 v{VT}, 0")])
                add(pg + 2, self.poll_issue(VT, VT + 2))
            if i == 4:
                add(60, self.poll_check("nc", VT, VT + 2, tagread=True))
                spread(side, self.switch_flags(VT + 2).g + self.ur_poll_addr(VT).g, 61, 110)
            if i == self.o.get("hkpf", 12):
                spread(side, self.conv_hk_setup(VT + 4).g, 10, pg + 3)
            if i == 14:
                hk = self.conv_hk(VT + 4).g
                spread(side, hk[:3], 114, 127)
                self.hk_rest = hk[3:]
            if i == 15:
                spread(side, self.hk_rest[:-1], 0, 110)
            st = interleave(mf, side)
            if self.prof and (self.o.get("fine") == 2 or (self.o.get("fine") == 1 and i % 2 == 1)):
                st += self.stamp()
            steps.append(st)
        return steps

    def g1_epilogue(self):
        o = []
        A = lambda t, tag=None: o.append(I(t, tag))
        o.append(WAITDS())
        A("s_barrier")
        o += srd(SC, P_WS, WS_H_SIZE, WS_H)
        A(f"s_lshr_b32 s{U1}, s{S_WAVE}, 1")
        A(f"s_lshl1_add_u32 s{U0}, s{S_TT}, s{U1}")
        A(f"s_mul_i32 s{U0}, s{U0}, 28")
        A(f"s_add_u32 s{U0}, s{U0}, s{S_FT}")
        A(f"s_lshl_b32 s{U0}, s{U0}, 15")
        A(f"s_and_b32 s{U1}, s{S_WAVE}, 1")
        A(f"s_lshl_b32 s{U1}, s{U1}, 12")
        A(f"s_add_u32 s{U0}, s{U0}, s{U1}")
        A(f"s_mov_b32 s{S_C}, 0xbfb8aa3b")
        A(f"s_mov_b32 s{S_C+1}, 0xbfb8aa3b")
        T = 208

        def vreg(i, jp):
            f, a = self.acc1(i, jp)
            return a if f == "v" else a - 96

        def silu(i, j, tset, outreg):
            g = vreg(i, 2 * j); u = vreg(i, 2 * j + 1)
            t = T + 4 * tset
            c = S_C
            return [
                [I(f"v_pk_mul_f32 v[{t}:{t+1}], v[{g}:{g+1}], s[{c}:{c+1}]"), I(f"v_pk_mul_f32 v[{t+2}:{t+3}], v[{g+2}:{g+3}], s[{c}:{c+1}]")],
                [I(f"v_exp_f32 v{t+q}, v{t+q}") for q in range(4)],
                [I(f"v_pk_add_f32 v[{t}:{t+1}], v[{t}:{t+1}], 1.0 op_sel_hi:[1,0]"), I(f"v_pk_add_f32 v[{t+2}:{t+3}], v[{t+2}:{t+3}], 1.0 op_sel_hi:[1,0]"),
                 I(f"v_pk_mul_f32 v[{g}:{g+1}], v[{g}:{g+1}], v[{u}:{u+1}]"), I(f"v_pk_mul_f32 v[{g+2}:{g+3}], v[{g+2}:{g+3}], v[{u+2}:{u+3}]")],
                [I(f"v_rcp_f32 v{t+q}, v{t+q}") for q in range(4)],
                [I(f"v_pk_mul_f32 v[{t}:{t+1}], v[{t}:{t+1}], v[{g}:{g+1}]"), I(f"v_pk_mul_f32 v[{t+2}:{t+3}], v[{t+2}:{t+3}], v[{g+2}:{g+3}]")],
                [I(f"v_cvt_pk_bf16_f32 v{outreg}, v{t}, v{t+1}"), I(f"v_cvt_pk_bf16_f32 v{outreg+1}, v{t+2}, v{t+3}")],
            ]
        o += self.hk_rest[-1]
        extra = []
        n = 0
        for p in range(4):
            if p == 3:
                for r in range(64):
                    A(f"v_accvgpr_read_b32 v{r}, a{96+r}")
            for i in range(4):
                outb = 216 + 4 * (n & 1)
                a = silu(i, 2 * p, 0, outb)
                b = silu(i, 2 * p + 1, 1, outb + 2)
                for x, y in zip(a, b):
                    o += x + y
                A(f"buffer_store_dwordx4 v[{outb}:{outb+3}], v{VL16}, s[{SC}:{SC+3}], s{U0} offen offset:{i*1024} {self.stm}", tag="hst")
                o[-1].tag = ("hst", p >> 1)
                if n == self.o.get("h1n", 11):
                    o.append(WAITTAG(("hst", 0)))
                    o += flat(self.flag_store("h1", 228))
                if extra:
                    o += extra.pop(0)
                if self.o.get("urlate", True):
                    if n == self.o.get("urn", 6) - 3:
                        o += self.poll_issue(VT, VT + 2)
                    if n == self.o.get("urn", 6):
                        o += self.poll_check("ur", VT, VT + 2) + self.conv_ur_loads().flat()
                n += 1
            if p < 3:
                A(f"s_add_u32 s{U0}, s{U0}, 8192")
        return o

    def helper(self):
        o = [I("L_helper:")]
        A = lambda t, tag=None: o.append(I(t, tag))
        L = VLANE
        VPWv, VPXv, AD = 8, 9, 10
        SH, C = 16, 24
        RAW = (40, 80)
        KU, VU, AC, O = 120, 124, 128, 160
        S_PW = S_XK
        A(f"s_sub_u32 s{T0}, s2, 224")
        A(f"s_lshl2_add_u32 s{T1}, s{T0}, s{S_WAVE}")
        A(f"s_mul_i32 s{S_PW}, s{T1}, 3584")
        A(f"s_add_u32 s{S_PW}, s{S_PW}, {WSLAB}")
        A(f"s_lshl_b32 s{S_PX}, s{T1}, 15")
        A(f"s_add_u32 s{S_PX}, s{S_PX}, 128")
        A(f"v_cmp_le_u32 vcc, 28, v{L}")
        A(f"v_subrev_u32 v3, 28, v{L}")
        A(f"v_cndmask_b32 v3, v{L}, v3, vcc")
        A(f"v_mov_b32 v4, {WSLAB}")
        A("v_cndmask_b32 v4, 0, v4, vcc")
        A("v_lshl_add_u32 v4, v3, 7, v4")
        A("v_cmp_le_u32 vcc, 28, v3")
        A(f"v_mov_b32 v5, {OOB}")
        A(f"v_cndmask_b32 v{VPWv}, v4, v5, vcc")
        A(f"v_and_b32 v3, 15, v{L}")
        A(f"v_lshrrev_b32 v4, 4, v{L}")
        A("v_lshlrev_b32 v5, 11, v3")
        A(f"v_lshl_add_u32 v{VPXv}, v4, 7, v5")
        o += self.after_karg()
        o += srd(SW, P_WG, 1024 * 7168)
        o += srd(SX, P_Q, 2048 * 2048)

        def pw():
            return [I(f"buffer_load_dword v{self.dummy()}, v{VPWv}, s[{SW}:{SW+3}], s{S_PW} offen", tag="pf"),
                    I(f"s_add_u32 s{S_PW}, s{S_PW}, {2*WSLAB}")]

        def px():
            if self.o.get("xg1", True):
                return []
            return [I(f"buffer_load_dword v{self.dummy()}, v{VPXv}, s[{SX}:{SX+3}], s{S_PX} offen", tag="pf"),
                    I(f"s_add_u32 s{S_PX}, s{S_PX}, 512")]
        o += px() + pw() + pw() + px()
        o += self.misc_setup()
        A(f"s_lshl2_add_u32 s{T2}, s2, s{S_WAVE}")
        A(f"s_cmp_lg_u32 s{T2}, {224*4}")
        A("s_cbranch_scc1 L_notag")
        A(f"s_memrealtime s[{S_NC}:{S_NC+1}]")
        A(f"v_lshlrev_b32 v14, 31, v{L}")
        A(f"v_min_u32 v14, 1, v{L}")
        A("v_lshlrev_b32 v14, 31, v14")
        A("s_waitcnt lgkmcnt(0)")
        A(f"v_mov_b32 v16, s{S_NC}")
        A(f"v_mov_b32 v17, s{S_NC+1}")
        A(f"buffer_store_dwordx2 v[16:17], v14, s[{SF}:{SF+3}], 0 offen sc1")
        o[-1].pseudo = "nocount"
        A("L_notag:")
        A(f"s_sub_u32 s{T0}, s2, 224")
        A(f"v_and_b32 v3, 15, v{L}")
        o += pw()
        o += srd(SA, P_K, 2048 * 2048) + srd(SB, P_V, 2048 * 2048) + srd(SC, P_SH, 8192)
        A(f"s_lshr_b32 s{T1}, s{T0}, 1")
        A(f"s_and_b32 s{T0}, s{T0}, 1")
        A(f"s_lshl2_add_u32 s{T2}, s{T0}, s{S_WAVE}")
        A(f"s_lshl_b32 s{T3}, s{T2}, 19")
        A(f"v_lshlrev_b32 v{AD}, 14, v4")
        A(f"v_lshl_add_u32 v{AD}, v3, 3, v{AD}")
        A(f"v_add_u32 v{AD}, s{T3}, v{AD}")
        A(f"s_lshl_b32 s{T3}, s{T1}, 7")
        A(f"v_add_u32 v{AD}, s{T3}, v{AD}")
        A(f"s_lshl_b32 s{T3}, s{T1}, 9")
        A(f"v_lshlrev_b32 v{AD+1}, 5, v3")
        A(f"buffer_load_dwordx4 v[{SH}:{SH+3}], v{AD+1}, s[{SC}:{SC+3}], s{T3} offen")
        A(f"buffer_load_dwordx4 v[{SH+4}:{SH+7}], v{AD+1}, s[{SC}:{SC+3}], s{T3} offen offset:16")
        A(f"s_lshl_b32 s{T3}, s{S_WAVE}, 5")
        A(f"s_sub_u32 s{T3}, 127, s{T3}")
        A(f"v_sub_u32 v{AD+2}, s{T3}, v4")
        A(f"v_lshlrev_b32 v{AD+3}, 13, v3")
        A("v_and_b32 v7, 7, v3")

        def loads(buf):
            K = RAW[buf]; V = K + 22
            g = []
            for r in range(11):
                if r < 3:
                    g.append([I(f"v_subrev_u32 v{AD+1}, {(3-r)*2048}, v{AD}"), I(f"v_min_u32 v{AD+1}, {OOB}, v{AD+1}"),
                              I(f"buffer_load_dwordx2 v[{K+2*r}:{K+2*r+1}], v{AD+1}, s[{SA}:{SA+3}], 0 offen {self.nk}")])
                else:
                    rr = r - 3
                    g.append(([I(f"s_movk_i32 s{T3}, {(rr // 2) * 4096}")] if rr % 2 == 0 else []) +
                             [I(f"buffer_load_dwordx2 v[{K+2*r}:{K+2*r+1}], v{AD}, s[{SA}:{SA+3}], s{T3} offen offset:{(rr % 2)*2048} {self.nk}")])
                    g.append([I(f"buffer_load_dwordx2 v[{V+2*rr}:{V+2*rr+1}], v{AD}, s[{SB}:{SB+3}], s{T3} offen offset:{(rr % 2)*2048} {self.nk}")])
            g[-1].append(I(f"v_add_u32 v{AD}, {32*2048}, v{AD}"))
            return g

        def compute(buf):
            c_ = []
            A = lambda t, tag=None: c_.append(I(t, tag))

            def unpack(dst, src):
                A(f"v_lshlrev_b32 v{dst}, 16, v{src}")
                A(f"v_and_b32 v{dst+1}, 0xffff0000, v{src}")
                A(f"v_lshlrev_b32 v{dst+2}, 16, v{src+1}")
                A(f"v_and_b32 v{dst+3}, 0xffff0000, v{src+1}")
            K = RAW[buf]; V = K + 22
            for r in range(11):
                unpack(KU, K + 2 * r)
                for j in range(4):
                    e = r - j
                    if e < 0 or e > 7:
                        continue
                    c = C + (3 - j) * 4
                    a = AC + 4 * e
                    for h in range(2):
                        if j == 0:
                            A(f"v_pk_mul_f32 v[{a+2*h}:{a+2*h+1}], v[{KU+2*h}:{KU+2*h+1}], v[{c+2*h}:{c+2*h+1}]")
                        else:
                            A(f"v_pk_fma_f32 v[{a+2*h}:{a+2*h+1}], v[{KU+2*h}:{KU+2*h+1}], v[{c+2*h}:{c+2*h+1}], v[{a+2*h}:{a+2*h+1}]")
                e = r - 3
                if e >= 0:
                    unpack(VU, V + 2 * e)
                    a = AC + 4 * e
                    for h in range(2):
                        A(f"v_pk_mul_f32 v[{a+2*h}:{a+2*h+1}], v[{a+2*h}:{a+2*h+1}], v[{VU+2*h}:{VU+2*h+1}]")
            A("s_waitcnt lgkmcnt(0)")
            A(f"v_xor_b32 v6, v{AD+2}, v7")
            A(f"v_lshl_add_u32 v6, v6, 4, v{AD+3}")
            A(f"v_subrev_u32 v{AD+2}, 4, v{AD+2}")
            for dd in range(4):
                for m in range(4):
                    A(f"v_cvt_pk_bf16_f32 v{O+dd*4+m}, v{AC+4*(7-2*m)+dd}, v{AC+4*(6-2*m)+dd}")
                A(f"ds_write_b128 v6, v[{O+dd*4}:{O+dd*4+3}] offset:{dd*2048}")
            return c_

        def mix(comp, groups):
            out = []
            n = len(groups)
            step = len(comp) / (n + 1.0)
            k = 0
            for idx, x in enumerate(comp):
                while k < n and idx >= k * step:
                    out += groups[k]; k += 1
                out.append(x)
            while k < n:
                out += groups[k]; k += 1
            return out
        o += flat(loads(0))
        o += pw() + px()
        for dd in range(4):
            for tap in range(4):
                src = SH + 2 * dd + (tap >> 1)
                if tap & 1:
                    A(f"v_and_b32 v{C+tap*4+dd}, 0xffff0000, v{src}")
                else:
                    A(f"v_lshlrev_b32 v{C+tap*4+dd}, 16, v{src}")
        head = o
        last = [I(f"s_mov_b32 s{S_PX}, {OOB}"), I(f"s_cmp_eq_u32 s{S_CNT}, 1"), I(f"s_cselect_b32 s{T3}, {OOB}, 0"),
                I(f"v_or_b32 v{AD}, s{T3}, v{AD}")]
        body = mix(compute(0), [pw()] + loads(1) + [pw()]) + mix(compute(1), [px() + last] + loads(0))
        o = []
        o += self.stamp(58)
        o += self.g2_setup(VT).flat()
        for b in range(2):
            o += flat(self.wd_dma(b))
        o += srd(SP, P_WS, WS_UR_SIZE, WS_UR)
        A(f"s_lshl2_add_u32 s{T2}, s{T1}, s{S_WAVE}")
        A(f"s_lshl_b32 s{T2}, s{T2}, 16")
        A(f"s_xor_b32 s{T0}, s{T0}, 1")
        A(f"s_lshl_b32 s{T0}, s{T0}, 11")
        A(f"s_add_u32 s{T2}, s{T2}, s{T0}")
        A(f"s_and_b32 s{T0}, s{S_WAVE}, 1")
        A(f"s_lshl_b32 s{T0}, s{T0}, 2")
        A(f"s_lshl_b32 s{T3}, s{S_WAVE}, 15")
        for q in range(4):
            A(f"s_add_u32 s{T1}, s{T0}, {q}")
            A(f"v_xor_b32 v{AD+q}, s{T1}, v{L}")
            A(f"v_lshlrev_b32 v{AD+q}, 4, v{AD+q}")
            A(f"v_add_u32 v{AD+q}, s{T3}, v{AD+q}")
        o.append(WAITDS())
        A("s_barrier")
        for i in range(16):
            for hf in range(2):
                r = 16 + (i * 2 + hf) * 4
                A(f"ds_read_b128 v[{r}:{r+3}], v{AD + (i >> 2)} offset:{i*2048 + hf*1024}")
        for i in range(16):
            for hf in range(2):
                r = 16 + (i * 2 + hf) * 4
                if not self.o.get("nourst"):
                    A(f"buffer_store_dwordx4 v[{r}:{r+3}], v{VL16}, s[{SP}:{SP+3}], s{T2} offen offset:{hf*1024} {self.stm}", tag="urst")
            A(f"s_add_u32 s{T2}, s{T2}, 4096")
        A("s_barrier")
        o += self.conv_hk_setup(VT + 4).flat()
        A(f"v_mov_b32 v{VT}, 0")
        o += self.poll_issue(VT, VT + 2)
        self.slot_over = {2: 2, 3: 3, 4: 2, 5: 3}
        o += flat(self.wd_dma(2)) + flat(self.wd_dma(3))
        o += self.poll_check("nch", VT, VT + 2, tagread=True)
        o += self.switch_flags(VT + 2).flat()
        o.append(WAITTAG("urst"))
        o += flat(self.flag_store("u", VT))
        o += self.stamp(60)
        gl, gs = self.g_helper()
        o += gl
        for b in range(4):
            o += flat(self.wd_reads(b))
        o += flat(self.wd_dma(4, 3)) + flat(self.wd_dma(5)) + flat(self.wd_dma(6)) + flat(self.wd_dma(7))
        o += gs
        o += self.ur_poll_addr(VT).flat()
        o += self.poll_issue(VT, VT + 2)
        o += flat(self.wd_reads(4)) + flat(self.wd_reads(5))
        o.append(WAITDS())
        A("s_barrier")
        o += self.conv_hk(VT + 4).flat()
        self.slot_over = {}
        o += self.poll_check("urh", VT, VT + 2)
        o += self.conv_ur_loads().flat()
        o += srd(SC, P_WS, WS_H_SIZE, WS_H)
        A("s_waitcnt vmcnt(0) lgkmcnt(0)")
        o += flat(self.flag_store("g", VT))
        o += self.stamp(59)
        A("s_branch L_join")
        tail = o
        head, _ = fix_m0(head); tail, _ = fix_m0(tail)
        st = State(); st.vm.append(({("v", 236)}, "pf")); st.smem.append({("s", n) for n in range(4, 30)} | {("s", 98), ("s", 99), ("s", 100), ("s", 101)})
        head, st = insert_waits(head, st)
        b1, st1 = insert_waits([Ins(x.text, x.tag) for x in body], st.copy())
        b2, st2 = insert_waits([Ins(x.text, x.tag) for x in body], st1.copy())
        b3, st3 = insert_waits([Ins(x.text, x.tag) for x in body], st2.copy())
        assert text_of(b2) == text_of(b3)
        body = merge_waits(b1, b2)
        tail, _ = insert_waits(tail, st2)
        seq = head + [I(f"s_mov_b32 s{S_CNT}, 4"), I("L_hloop:")] + body + \
            [I(f"s_sub_u32 s{S_CNT}, s{S_CNT}, 1"), I(f"s_cmp_lg_u32 s{S_CNT}, 0"), I("s_cbranch_scc1 L_hloop")] + tail
        seq, _ = pad_hazards(seq)
        return seq

    VH = 230
    VHP, VHD, VHQ = 234, 236, 235

    def hf(self, q, ks):
        return 64 + (q % 4) * 8 + ks * 4

    def acc2(self, i, j):
        if i < 4:
            b = (i * 4 + j) * 4
            return f"v[{b}:{b+3}]"
        b = ((i - 4) * 4 + j) * 4
        return f"a[{b}:{b+3}]"

    def h_dma(self, n):
        out = []
        for m in range(8):
            g = []
            if m % 4 == 0:
                g.append(I(f"s_add_u32 s{S_H0}, s{S_HB}, {(0 if self.o.get('hfake') else n)*16384 + (m >> 2)*4096}"))
            i = I(f"buffer_load_dwordx4 v{VL16}, s[{SC}:{SC+3}], s{S_H0} offen offset:{(m&3)*1024} {self.ldm} lds", tag=("h", n))
            i.arg = (S_HD, L_H[n % 3] + (m >> 2) * 4096, ("h", n))
            g.append(i)
            out.append(g)
        return out

    def h_reads(self, q):
        n, i = self.seq[q]
        out = []
        for ks in range(2):
            b = self.hf(q, ks)
            out.append([I(f"ds_read_b128 a[{b}:{b+3}], v{self.VH + (i >> 1)} offset:{ks*8192 + (i&1)*1024}", tag=("hr", q))])
        if (i & 1) and n < 13:
            d = L_H[(n + 1) % 3] - L_H[n % 3]
            out[-1].append(I(f"v_add_u32 v{self.VH + (i >> 1)}, {d & 0xffffffff}, v{self.VH + (i >> 1)}"))
        return out

    def h_addr_setup(self):
        s = Stream(); A = s.A
        for m, x in enumerate((0, 2, 1, 3)):
            A(f"s_xor_b32 s{U0}, s{S_KQ}, {x}")
            A(f"s_lshl_b32 s{U0}, s{U0}, 11")
            A(f"s_and_b32 s{U1}, s{S_HD}, 16384")
            A(f"s_add_u32 s{U0}, s{U0}, s{U1}")
            A(f"s_add_u32 s{U0}, s{U0}, {L_H[0]}")
            A(f"v_add_u32 v{self.VH+m}, s{U0}, v{VL16}")
        return s

    EQ, EY, EG, VQ, VY, VG = 96, 112, 128, 132, 133, 134

    def epi_loads(self):
        s = Stream(); A = s.A
        L = VLANE
        VQ, VY, VG = self.VQ, self.VY, self.VG
        s.ext(srd(SW, P_OUT, 2048 * 2048))
        s.ext([srd(SA, P_WS, WS_G_SIZE, WS_G)])
        A(f"v_and_b32 v{VG}, 15, v{L}")
        A(f"v_bfe_u32 v{VY}, v{L}, 4, 1")
        A(f"v_lshrrev_b32 v135, 5, v{L}")
        A(f"v_lshl_add_u32 v135, v{VY}, 1, v135")
        A(f"v_lshlrev_b32 v{VQ}, 11, v{VG}")
        A(f"v_lshl_add_u32 v{VQ}, v135, 4, v{VQ}")
        A(f"v_lshlrev_b32 v{VG}, 3, v{VG}")
        A(f"v_bfe_u32 v{VY}, v{L}, 2, 2")
        A(f"v_lshl_add_u32 v135, v135, 3, v{VY}")
        A(f"v_and_b32 v{VY}, 3, v{L}")
        A(f"v_lshlrev_b32 v138, 3, v{VY}")
        A(f"v_lshl_add_u32 v135, v135, 6, v138")
        A(f"v_add_u32 v135, s{S_LA}, v135")
        A(f"v_lshrrev_b32 v138, 2, v{L}")
        A(f"v_lshlrev_b32 v138, 12, v138")
        A(f"v_lshl_add_u32 v{VY}, v{VY}, 4, v138")
        A(f"s_lshl2_add_u32 s{U0}, s{S_TH}, s{S_KQ}")
        A(f"s_lshl_b32 s{U1}, s{U0}, 6")
        A(f"s_lshl_b32 s{U2}, s{S_DB}, 18")
        A(f"s_add_u32 s{U2}, s{U2}, s{U1}")
        A(f"s_lshl_b32 s{U1}, s{U0}, 8")
        G = self.EG
        for m in range(4):
            i = I(f"buffer_load_dwordx4 v{VY}, s[{SB}:{SB+3}], s{U2} offen offset:{m*1024} {self.ldm} lds", tag="y2l")
            i.arg = (S_LA, 0, "y2l")
            s.g.append(([WAITDS(("wdr", 24))] if m == 0 else []) + [i] + ([I(f"s_add_u32 s{U2}, s{U2}, {65536 - 1024}")] if m < 3 else []))
        A(f"buffer_load_dwordx2 v[{G}:{G+1}], v{VG}, s[{SA}:{SA+3}], s{U1} offen {self.ldm}", tag="epi")
        A(f"buffer_load_dwordx2 v[{G+2}:{G+3}], v{VG}, s[{SA}:{SA+3}], s{U1} offen offset:128 {self.ldm}", tag="epi")
        A(f"s_lshl_b32 s{U0}, s{U0}, 16")
        A(f"s_lshl_b32 s{U2}, s{S_DB}, 7")
        A(f"s_add_u32 s{U0}, s{U0}, s{U2}")
        A(f"s_add_u32 s{U1}, s{U0}, 32768")
        for ii in range(2):
            for jj in range(2):
                r = self.EQ + (ii * 2 + jj) * 4
                A(f"buffer_load_dwordx4 v[{r}:{r+3}], v{VQ}, s[{SX}:{SX+3}], s{U0+ii} offen offset:{jj*64}", tag="epi")
        return s

    def y2_reads(self):
        out = [[WAITTAG("y2l")]]
        for jj in range(2):
            for hh in range(2):
                for ii in range(2):
                    r = self.EY + (jj * 2 + hh) * 4 + ii * 2
                    out.append([I(f"ds_read_b64_tr_b16 v[{r}:{r+1}], v135 offset:{(32*jj + 4*hh)*64 + ii*32}")])
        return out

    def group_mfmas(self, q):
        n, i = self.seq[q]
        mf = []
        for j in range(4):
            for ks in range(2):
                f, b = self.wreg(2 * n + ks)
                b += 4 * j
                h = self.hf(q, ks)
                c = "0" if (n == 0 and ks == 0) else self.acc2(i, j)
                mf.append(I(f"v_mfma_f32_16x16x32_bf16 {self.acc2(i, j)}, {f}[{b}:{b+3}], a[{h}:{h+3}], {c}"))
        return mf

    def wd_side(self, side, n, span):
        nxt = {v: k for k, v in self.prev.items()}
        add = lambda g, l: side.setdefault(g, []).extend(l)
        rds = self.rd2.get(n, [])
        free = [g for g in range(0, 47) if not any(x.kind == "ds" for x in side.get(g, []))]
        last = 0
        for q, blk in enumerate(rds):
            wr = self.wd_reads(blk)
            gs = free[8 * q:8 * q + 8]
            add(gs[0] - 1, wr[0])
            for g, x in zip(gs, wr[1:]):
                add(g, x)
            last = gs[-1]
            if blk in nxt:
                self.pend_dma.append((nxt[blk], blk, last + 9))
        g = 0
        for nb, blk, g0 in self.pend_dma:
            g = max(g, g0)
            for grp in self.wd_dma(nb, blk):
                while any(x.kind == "dma" for x in side.get(g, [])):
                    g += 1
                add(min(g, 63), grp); g += 2
        self.pend_dma = []

    def dstep(self, n):
        mf = []
        side = {}
        add = lambda g, l: side.setdefault(g, []).extend(l)
        q0 = 8 * n
        for i in range(8):
            add(8 * i - 1, [WAITDS(("hr", q0 + i))])
            mf += self.group_mfmas(q0 + i)
        for i in range(4):
            for k, g in enumerate(self.h_reads(q0 + i + 2)):
                add(8 * i + 1 + 2 * k, g)
        for k, g in enumerate(self.h_reads(q0 + 6) + self.h_reads(q0 + 7)):
            add(33 + 2 * k, g)
        add(47, [WAITDS(), WAITTAG([("h", n + 1)] + ([("h", 12)] if n == 10 else []))])
        side[48] = [I("s_barrier")] + side.get(48, [])
        for i in range(2):
            for k, g in enumerate(self.h_reads(q0 + 8 + i)):
                add(49 + 8 * i + 2 * k, g)
        if n == 0:
            if not self.o.get("nohall"):
                add(50, self.poll_check_n("hall", self.VHP, self.VHD, 28))
        for k, g in enumerate(self.h_rest_prev):
            add(1 + 4 * k, g)
        hd = self.h_dma(n + 3)
        nnow = 8 if n >= 9 else 3
        for k in range(nnow):
            add(min(52 + (4 if nnow == 3 else 1) * k + (k // 2 if nnow == 8 else 0), 63), hd[k])
        self.h_rest_prev = hd[nnow:]
        self.wd_side(side, n, 44)
        if n == 0:
            for q, g in enumerate(self.wd_dma(self.b0_blk) + self.wd_dma(self.b1_blk)):
                add(20 + 3 * q, g)
        ny = self.o.get("ny", 2)
        for k in range(ny):
            c = ny * n + k
            if c < 8:
                g0 = (4 + (40 // ny) * k)
                spread(side, self.y2o[c], g0, g0 + 6)
        if n == self.o.get("yflag", 5):
            add(20, [WAITTAG("y2st")])
            spread(side, self.flag_store("y", 228), 21, 30)
        if n == 6:
            s = Stream()
            s.A(f"s_lshl_b32 s{U0}, s{S_DB}, 16")
            s.A(f"s_add_u32 s{U0}, s{U0}, 384")
            s.A(f"v_lshlrev_b32 v224, 10, v{VLANE}")
            s.A(f"v_add_u32 v224, s{U0}, v224")
            s.A(f"s_lshl2_add_u32 s{U1}, s{S_TH}, s{S_KQ}")
            s.A(f"s_lshl1_add_u32 s{U1}, s{U1}, {224*4}")
            s.A(f"s_lshl_b32 s{U1}, s{U1}, 10")
            s.A(f"s_add_u32 s{U1}, s{U1}, 640")
            s.A(f"v_and_b32 v225, 1, v{VLANE}")
            s.A(f"v_lshlrev_b32 v225, 10, v225")
            s.A(f"v_add_u32 v225, s{U1}, v225")
            spread(side, s.g, 10, 60)
        if n == 7:
            add(-1, self.poll_issue(225, 226))
            add(50, self.poll_check("g", 225, 226))
        if n == 8:
            add(50, self.poll_issue(224, 226))
        if n == 9:
            add(50, self.poll_check("y2", 224, 226))
        if n == 10:
            el = self.epi_loads().g
            k0 = min(k for k, g in enumerate(el) if any(x.kind in ("vload", "dma") for x in g))
            spread(side, el[:k0] + self.x_setup().g, 0, 46)
            self.el_rest = el[k0:]
        if self.o.get("fine") == 4 and n < 4:
            for g in (23, 46, 48, 63):
                add(g, self.stamp())
        return interleave(mf, side)

    def tail(self):
        mf = []
        side = {}
        add = lambda g, l: side.setdefault(g, []).extend(l)
        for q in range(88, 112):
            add(8 * (q - 88) - 1, [WAITDS(("hr", q))])
            mf += self.group_mfmas(q)
            if q + 2 < 112:
                for k, g in enumerate(self.h_reads(q + 2)):
                    add(8 * (q - 88) + 1 + 2 * k, g)
        add(47, [WAITTAG(("h", 13))])
        side[48] = [I("s_barrier")] + side.get(48, [])
        self.wd_side(side, 11, 40)
        spread(side, self.el_rest, 0, 36)
        spread(side, self.y2_reads(), 52, 64)
        ga = self.ga_stream().g
        k1 = self.o.get("gasplit", 40)
        spread(side, ga[:k1], 70, 96)
        spread(side, ga[k1:], 150, 191)
        s = Stream()
        for ii in range(2):
            for j in range(4):
                s.A(f"ds_write_b128 v225, {self.acc2(6+ii, j)} offset:{(ii*4 + j)*1024}", tag="xw")
        for q, g in enumerate(s.g):
            add((98, 100, 101, 102, 103, 104, 106, 108)[q], g)
        add(114, [WAITDS("xw")])
        side[115] = [I("s_barrier")] + side.get(115, [])
        XT = 140
        s = Stream()
        for r in range(5):
            s.A(f"ds_read_b128 v[{XT+4*r}:{XT+4*r+3}], v229 offset:{r*1024}")
        spread(side, s.g, 116, 121)
        s = Stream()
        for r in range(8):
            t = XT + 4 * (r % 5)
            for h in range(4):
                s.A(f"v_add_f32 v{32+4*r+h}, v{32+4*r+h}, v{t+h}")
            if r + 5 < 8:
                s.A(f"ds_read_b128 v[{t}:{t+3}], v229 offset:{(r+5)*1024}")
            if r == 4:
                s.A(f"s_add_u32 s{T0}, s{T0}, 4096")
            s.A(f"buffer_store_dwordx4 v[{32+4*r}:{35+4*r}], v{VL16}, s[{SP}:{SP+3}], s{T0} offen offset:{(r&3)*1024} {self.stm}", tag="xst")
        spread(side, s.g, 124, 150)
        if self.o.get("fine") == 4:
            for g in (-1, 24, 46, 48, 72, 95, 113, 115, 123, 150, 170):
                add(g, self.stamp())
        return interleave(mf, side)

    GA, GU = 64, 136

    def ga_stream(self):
        s = Stream(); A = s.A
        GA, U, G = self.GA, self.GU, self.EG
        for ii in range(2):
            for jj in range(2):
                q = self.EQ + (ii * 2 + jj) * 4
                d = GA + (ii * 2 + jj) * 8
                for e in range(4):
                    y = self.EY + (jj * 2 + (e >> 1)) * 4 + ii * 2 + (e & 1)
                    A(f"v_lshlrev_b32 v{d+2*e}, 16, v{q+e}")
                    A(f"v_and_b32 v{d+2*e+1}, 0xffff0000, v{q+e}")
                    A(f"v_lshlrev_b32 v{U}, 16, v{y}")
                    A(f"v_and_b32 v{U+1}, 0xffff0000, v{y}")
                    A(f"v_mul_f32 v{d+2*e}, v{d+2*e}, v{G+2*ii}")
                    A(f"v_mul_f32 v{d+2*e+1}, v{d+2*e+1}, v{G+2*ii}")
                    A(f"v_mul_f32 v{d+2*e}, v{d+2*e}, v{U}")
                    A(f"v_mul_f32 v{d+2*e+1}, v{d+2*e+1}, v{U+1}")
        return s

    def x_setup(self):
        s = Stream(); A = s.A
        s.ext([srd(SP, P_WS, WS_X_SIZE, WS_X)])
        A(f"s_lshl2_add_u32 s{T0}, s2, s{S_WAVE}")
        A(f"s_xor_b32 s{T1}, s{T0}, 4")
        A(f"s_lshl_b32 s{T2}, s{T1}, 10")
        A(f"s_add_u32 s{T2}, s{T2}, 512")
        A(f"v_mov_b32 v224, s{T2}")
        A(f"s_lshl_b32 s{T0}, s{T0}, 13")
        A(f"s_lshl_b32 s{T1}, s{T1}, 13")
        A(f"v_add_u32 v225, s{S_LA}, v{VL16}")
        A(f"v_xor_b32 v229, 8192, v225")
        return s

    def final(self):
        o = []
        A = lambda t, tag=None: o.append(I(t, tag))
        GA, U, G = self.GA, self.GU, self.EG
        for ii in range(2):
            for j in range(4):
                A(f"ds_write_b128 v225, {self.acc2(4+ii, j)} offset:{L_A - L_B + (ii*4 + j)*1024}")
        o.append(WAITTAG("xst"))
        o += flat(self.flag_store("x", 226))
        o += self.poll_issue(224, 226)
        o.append(WAITDS())
        A("s_barrier")
        for r in range(8):
            A(f"ds_read_b128 v[{192+4*r}:{195+4*r}], v229 offset:{L_A - L_B + r*1024}")
        o += self.stamp()
        o += self.poll_check("x", 224, 226)
        o += self.stamp()
        for r in range(8):
            if r == 4:
                A(f"s_add_u32 s{T1}, s{T1}, 4096")
            A(f"buffer_load_dwordx4 v[{160+4*r}:{163+4*r}], v{VL16}, s[{SP}:{SP+3}], s{T1} offen offset:{(r&3)*1024} {self.ldm}")
        for r in range(16):
            A(f"v_pk_add_f32 v[{2*r}:{2*r+1}], v[{2*r}:{2*r+1}], v[{192+2*r}:{193+2*r}]")
        for ii in range(2):
            for jj in range(2):
                x = (ii * 4 + 2 * jj) * 4
                d = GA + (ii * 2 + jj) * 8
                for e in range(4):
                    A(f"v_pk_add_f32 v[{x+2*e}:{x+2*e+1}], v[{x+2*e}:{x+2*e+1}], v[{160+x+2*e}:{161+x+2*e}]")
                for r in range(4):
                    A(f"v_permlane16_swap_b32 v{x+r}, v{x+4+r}")
                for e in range(4):
                    A(f"v_pk_fma_f32 v[{x+2*e}:{x+2*e+1}], v[{x+2*e}:{x+2*e+1}], v[{G+2*ii}:{G+2*ii+1}], v[{d+2*e}:{d+2*e+1}] op_sel:[0,1,0] op_sel_hi:[1,1,1]")
                ob = U + (ii * 2 + jj) * 4
                for e in range(4):
                    A(f"v_cvt_pk_bf16_f32 v{ob+e}, v{x+2*e}, v{x+2*e+1}")
                A(f"buffer_store_dwordx4 v[{ob}:{ob+3}], v{self.VQ}, s[{SW}:{SW+3}], s{U0+ii} offen offset:{jj*64}")
        return o

    def conv_phase(self):
        o = self.conv_prep()
        o += [WAITTAG("hk"), WAITDS()]
        o += self.conv_reads(0)
        o += self.stamp()
        nxt = {v: k for k, v in self.prev.items()}
        rr = {2: [1, 4], 4: [0, 2, 4, 6], 5: [0, 1, 3, 4, 6], 6: [0, 1, 3, 4, 6, 7], 8: list(range(8))}[self.kc]
        for r in range(8):
            mf = self.conv_mfmas(r)
            n = len(mf)
            side = {}
            add = lambda g, l: side.setdefault(g, []).extend(l)
            e = n - 36
            if r < 7:
                rd = self.conv_reads(r + 1)
                for k, x in enumerate(rd):
                    x.tag = ("cr", r + 1, k // 12)
                    add(e + 8 + k, [x])
                add(n - 1, [WAITDS(("cr", r + 1, 0))])
            if r > 0:
                add(9, [WAITDS(("cr", r, 1))])
            if r == self.hflag_r:
                add(self.o.get("h2gap", 0), [WAITTAG(("hst", 1))])
                spread(side, self.flag_store("h2", 228), self.o.get("h2gap", 0) + 1, self.o.get("h2gap", 0) + 5)
            for k in range(self.kc):
                if rr[k] == r:
                    blk = 6 + k
                    wr = self.wd_reads(blk)
                    add(e - 1 if e else -1, wr[0])
                    for q, g in enumerate(wr[1:]):
                        add(e + q, g)
                    for q, g in enumerate(self.wd_dma(nxt[blk], blk)):
                        add(e + 18 + 4 * q, g)
            if r == 0:
                s = Stream()
                s.A(f"s_lshr_b32 s{U0}, s{S_TH}, 1")
                s.A(f"s_lshr_b32 s{U1}, s{U0}, 2")
                s.A(f"s_and_b32 s{U0}, s{U0}, 3")
                s.A(f"s_lshl3_add_u32 s{U0}, s{U0}, s{U1}")
                s.A(f"s_lshl1_add_u32 s{U0}, s{S_KQ}, s{U0}")
                s.A(f"s_and_b32 s{U1}, s{S_TH}, 1")
                s.A(f"s_lshl_b32 s{U1}, s{U1}, 1")
                s.A(f"s_lshl2_add_u32 s{U0}, s{U0}, s{U1}")
                s.A(f"s_lshl_b32 s{U0}, s{U0}, 10")
                s.A(f"v_min_u32 v226, 27, v{VLANE}")
                s.A(f"v_lshrrev_b32 v225, 2, v226")
                s.A(f"v_lshlrev_b32 v225, 17, v225")
                s.A(f"v_and_b32 v227, 1, v226")
                s.A(f"v_lshl_add_u32 v225, v227, 10, v225")
                s.A(f"v_bfe_u32 v227, v226, 1, 1")
                s.A(f"v_lshl_add_u32 v225, v227, 7, v225")
                s.A(f"v_add_u32 v{self.VHP}, s{U0}, v225")
                s.G(f"v_cmp_gt_u32 vcc, 6, v{VLANE}", f"v_mov_b32 v225, s{U0}", f"v_cndmask_b32 v{self.VHQ}, v225, v{self.VHP}, vcc")
                spread(side, s.g, 4, n - 2, cap=3)
            if r == 2:
                spread(side, self.h_addr_setup().g, 0, n - 1, cap=3)
            if r == 5:
                ys, self.y2o = self.conv_out()
                spread(side, ys.g, 0, n - 1)
            pa, ca, pb, cb = self.o.get("hp", (1, 3, 4, 6))
            if r == pa:
                add(e + 16, self.poll_issue(self.VHQ, self.VHD))
            if r == pb:
                add(16, self.poll_issue(self.VHQ, self.VHD))
            if r in (ca, cb):
                st_ = 0 if r == ca else 1
                add(1, self.poll_check_n(f"h{st_}", self.VHQ, self.VHD, 2 if st_ == 0 else 6))
                for q, g in enumerate(self.h_dma(st_)):
                    add(3 + 2 * q if q < 7 else 32, g)
            if r == 7:
                add(14, [WAITDS(), WAITTAG(("h", 0))])
                add(15, [I("s_barrier")])
                if not self.o.get("nohall"):
                    add(17, self.poll_issue(self.VHP, self.VHD))
                hd = self.h_dma(2)
                for q in range(4):
                    add(20 + 4 * q, hd[q])
                for k, g in enumerate(self.h_reads(0) + self.h_reads(1)):
                    add(n - 11 + 2 * k, g)
                self.h_rest_prev = hd[4:]
            if self.o.get("fine") == 4:
                add(n - 1, self.stamp())
            o += interleave(mf, side)
        return o

    def prof_out(self):
        if not self.prof:
            return []
        o = self.stamp() + self.rstamp(63)
        o += srd(SA, P_WS, 1 << 20, WS_PROF)
        o.append(I(f"s_lshl2_add_u32 s{T0}, s2, s{S_WAVE}"))
        o.append(I(f"s_lshl_b32 s{T0}, s{T0}, 8"))
        o.append(I(f"v_lshlrev_b32 v0, 2, v{VLANE}"))
        o.append(I(f"buffer_store_dword v{VPROF}, v0, s[{SA}:{SA+3}], s{T0} offen"))
        return o

    def build(self):
        seq = self.common_start() + self.g1_start()
        for s in self.g1_steps():
            seq += s
        seq += self.stamp()
        seq += self.g1_epilogue()
        seq.append(I("L_join:"))
        self.join_stamp = self.nst
        seq += self.stamp()
        seq += self.conv_phase()
        self.g2_pos = len(seq)
        seq += self.stamp()
        for n in range(11):
            seq += self.dstep(n)
            if self.prof and (self.o.get("fine") == 3 or self.o.get("fine") == 1 and (n % 2 == 1 or n == 10)):
                seq += self.stamp()
        seq += self.tail()
        seq += self.stamp()
        seq += self.final()
        if self.prof:
            seq += self.stamp()
            seq.append(I("s_waitcnt vmcnt(0)"))
        seq += self.prof_out()
        self.check_wd(seq)
        seq, _ = fix_m0(seq)
        seq, st = insert_waits(seq)
        seq = hoist_salu(seq)
        seq, npad = pad_hazards(seq)
        hs = self.helper()
        self.npad = npad
        self.ninstr = len(seq) + len(hs)
        body = text_of(seq) + "\n    s_endpgm\n" + text_of(hs) + "\n" + text_of(self.slow) + "\nL_done:\n    s_endpgm\n"
        return "\n".join(kernel_header(NAME)) + "\n" + body

    def file(self):
        hdr = "".join(open("gated_mix__ssm_conv_h3__swiglu_ffn__prompt.s.ref").readlines()[:15])
        out = [hdr.rstrip("\n"), f"; @launch grid=(256,1,1) block=(256,1,1) lds={LDS}",
               '.amdgcn_target "amdgcn-amd-amdhsa--gfx950"', ".text", self.build(),
               '.section .rodata,"a"', ".p2align 6", kernel_desc(NAME, 512, 102, 256)]
        return "\n".join(out) + "\n"


if __name__ == "__main__":
    f = Fused(prof=("prof" in sys.argv))
    t = f.file()
    open("fused.s", "w").write(t)
    print("instrs", f.ninstr, "pads", f.npad, "stamps", f.nst)
```
